```python
import torch

def _softmax(x, axis=-1):
    return torch.softmax(x, dim=axis)
def _gelu(x):
    return torch.nn.functional.gelu(x, approximate="tanh")
def _silu(x):
    return torch.nn.functional.silu(x)
def _sigmoid(x):
    return torch.sigmoid(x)
def _layernorm(x, axis=-1, eps=1e-5):
    m = x.mean(dim=axis, keepdim=True)
    v = x.var(dim=axis, keepdim=True, unbiased=False)
    return (x - m) / torch.sqrt(v + eps)
def _scatter_add(tgt, idx, src, axis=0):
    return tgt.clone().index_add_(axis, idx, src)
def _segment_sum(src, seg, n):
    out = torch.zeros((n,) + src.shape[1:], dtype=src.dtype)
    return out.index_add_(0, seg, src)
def _pad(x, pw):
    flat = tuple(v for pair in reversed(pw) for v in pair)
    return torch.nn.functional.pad(x, flat)

kernel_name = 'interleave_layers__ssm_conv_h3__ssm_conv_s4__prompt'

def setup_inputs():

    _w = (lambda a: (lambda t: t.to(torch.bfloat16) if t.is_floating_point() else t)(torch.as_tensor(a)))
    def _A_setup():
        B, S, D = 1, 2048, 512
        ks = 4
        return {
            "q": _w((lambda *s: torch.randn(*s, dtype=torch.bfloat16) * 0.05)(B, S, D)),
            "k": _w((lambda *s: torch.randn(*s, dtype=torch.bfloat16) * 0.4)(B, S, D)),
            "v": _w((lambda *s: torch.randn(*s, dtype=torch.bfloat16) * 0.4)(B, S, D)),
            "shift_k": _w((lambda *s: torch.randn(*s, dtype=torch.bfloat16) * 0.4)(D, ks) * 0.5),
            "ssm_k": _w((lambda *s: torch.randn(*s, dtype=torch.bfloat16) * 0.4)(D, S) * (1.0 / S ** 0.5)),
            "ssm_D": _w((lambda *s: torch.randn(*s, dtype=torch.bfloat16) * 0.4)(D)),
        }
    _A_in = _A_setup()

    def _B_setup():
        B, L, D, N = 1, 2048, 512, 128
        A_re = -(lambda _x: torch.exp(torch.as_tensor(_x)))((lambda *s: torch.randn(*s, dtype=torch.bfloat16) * 6.4)(D, N))
        A_im = torch.pi * (lambda *s: torch.randn(*s, dtype=torch.bfloat16) * 0.05)(D, N)
        B_re = (lambda *s: torch.randn(*s, dtype=torch.bfloat16) * 0.1)(D, N)
        B_im = (lambda *s: torch.randn(*s, dtype=torch.bfloat16) * 0.1)(D, N)
        C_re = (lambda *s: torch.randn(*s, dtype=torch.bfloat16) * 0.1)(D, N)
        C_im = (lambda *s: torch.randn(*s, dtype=torch.bfloat16) * 0.1)(D, N)
        log_dt = (lambda *s: torch.randn(*s, dtype=torch.bfloat16) * 0.05)(D) * 0.5 - 4.0
        Dskip = (lambda *s: torch.randn(*s, dtype=torch.bfloat16) * 0.05)(D)
        return {
            "u": _w((lambda *s: torch.randn(*s, dtype=torch.bfloat16) * 0.05)(B, L, D)),
            "A_re": _w(A_re),
            "A_im": _w(A_im),
            "B_re": _w(B_re),
            "B_im": _w(B_im),
            "C_re": _w(C_re),
            "C_im": _w(C_im),
            "log_dt": _w(log_dt),
            "Dskip": _w(Dskip),
        }
    _B_in = _B_setup()

    return {
        "A_q": _A_in["q"],
        "A_k": _A_in["k"],
        "A_v": _A_in["v"],
        "A_shift_k": _A_in["shift_k"],
        "A_ssm_k": _A_in["ssm_k"],
        "A_ssm_D": _A_in["ssm_D"],
        "B_u": _B_in["u"],
        "B_A_re": _B_in["A_re"],
        "B_A_im": _B_in["A_im"],
        "B_B_re": _B_in["B_re"],
        "B_B_im": _B_in["B_im"],
        "B_C_re": _B_in["C_re"],
        "B_C_im": _B_in["C_im"],
        "B_log_dt": _B_in["log_dt"],
        "B_Dskip": _B_in["Dskip"],
    }

def reference(A_q, A_k, A_v, A_shift_k, A_ssm_k, A_ssm_D, B_u, B_A_re, B_A_im, B_B_re, B_B_im, B_C_re, B_C_im, B_log_dt, B_Dskip):
    def _A_ref(q, k, v, shift_k, ssm_k, ssm_D):
        B, S, D = q.shape
        ks = shift_k.shape[-1]
        k_pad = _pad(k, ((0, 0), (ks - 1, 0), (0, 0)))
        k_shift = torch.zeros_like(k)
        for t in range(ks):
            k_shift = k_shift + k_pad[:, t:t + S, :] * shift_k[:, ks - 1 - t][None, None, :]
        kv = k_shift * v
        L = 2 * S
        kv_pad = _pad(kv, ((0, 0), (0, S), (0, 0)))
        kf_pad = _pad(ssm_k, ((0, 0), (0, S)))
        kv_f = (lambda x, axes=(-2,-1): torch.fft.rfft2(x.float(), dim=axes))(kv_pad[:, None, :, :], axes=(1, 2))
        kf_f = (lambda x, axes=(-2,-1): torch.fft.rfft2(x.float(), dim=axes))(kf_pad[:, None, :], axes=(1, 2))
        kf_f = (lambda x, *d: x.permute(*d))(kf_f, 1, 2, 0)
        y_f = kv_f * kf_f[None, :, :, :]
        y = (lambda x, s, axes=(-2,-1): torch.fft.irfft2(x, s=s, dim=axes).to(torch.bfloat16))(y_f, (1, L), axes=(1, 2))[:, 0, :S, :]
        y = y + kv * ssm_D[None, None, :]
        return q * y

    def _B_ref(u, A_re, A_im, B_re, B_im, C_re, C_im, log_dt, Dskip):
        Bsz, L, D = u.shape
        dt = torch.exp(log_dt)[:, None]
        A = A_re + 1j * A_im
        Bc = B_re + 1j * B_im
        Cc = C_re + 1j * C_im
        logdA = dt * A
        dB = dt * Bc
        l = (lambda x, dt: x.to(dt))(torch.arange(L), A_re.dtype)
        P = torch.exp(logdA[:, :, None] * l[None, None, :])
        K = torch.einsum("dn,dnl,dn->dl", Cc, P, dB).real
        L2 = 2 * L
        Kp = _pad(K, ((0, 0), (0, L)))
        up = (lambda x, *d: x.permute(*d))(u, 0, 2, 1)
        up = _pad(up, ((0, 0), (0, 0), (0, L)))
        Kf = (lambda x, axes=(-2,-1): torch.fft.rfft2(x.float(), dim=axes))(Kp[:, None, :], axes=(-2, -1))
        Uf = (lambda x, axes=(-2,-1): torch.fft.rfft2(x.float(), dim=axes))(up[:, :, None, :], axes=(-2, -1))
        Yf = Uf * Kf[None, :, :, :]
        y = (lambda x, s, axes=(-2,-1): torch.fft.irfft2(x, s=s, dim=axes).to(torch.bfloat16))(Yf, (1, L2), axes=(-2, -1))[:, :, 0, :L]
        y = (lambda x, *d: x.permute(*d))(y, 0, 2, 1) + u * Dskip[None, None, :]
        return y

    x = A_q
    x = x + _A_ref(_layernorm(x, axis=-1), A_k, A_v, A_shift_k, A_ssm_k, A_ssm_D)
    x = x + _B_ref(_layernorm(x, axis=-1), B_A_re, B_A_im, B_B_re, B_B_im, B_C_re, B_C_im, B_log_dt, B_Dskip)
    x = x + _A_ref(_layernorm(x, axis=-1), A_k, A_v, A_shift_k, A_ssm_k, A_ssm_D)
    x = x + _B_ref(_layernorm(x, axis=-1), B_A_re, B_A_im, B_B_re, B_B_im, B_C_re, B_C_im, B_log_dt, B_Dskip)
    return x
```

```python
import re
TRANS = ('v_exp_f32','v_log_f32','v_rcp_f32','v_rsq_f32','v_sqrt_f32','v_sin_f32','v_cos_f32','v_rcp_iflag_f32')
def _regs(tok):
    tok = tok.strip()
    tok = re.sub(r'^-', '', tok)
    m = re.match(r'^abs\((.*)\)$', tok)
    if m: tok = m.group(1)
    m = re.match(r'^\|(.*)\|$', tok)
    if m: tok = m.group(1)
    m = re.match(r'^([vsa])(\d+)$', tok)
    if m: return {(m.group(1), int(m.group(2)))}
    m = re.match(r'^([vsa])\[(\d+):(\d+)\]$', tok)
    if m: return {(m.group(1), i) for i in range(int(m.group(2)), int(m.group(3))+1)}
    if tok == 'vcc': return {('s','vcc')}
    if tok == 'exec': return {('s','exec')}
    if tok == 'm0': return {('s','m0')}
    return set()
class Ins:
    def __init__(self, text):
        self.text = text
        t = text.split(';')[0].strip()
        self.op = t.split()[0] if t else ''
        rest = t[len(self.op):].strip()
        ops, depth, cur = [], 0, ''
        for ch in rest:
            if ch in '[(': depth += 1
            if ch in '])': depth -= 1
            if ch == ',' and depth == 0:
                ops.append(cur.strip()); cur = ''
            else: cur += ch
        if cur.strip(): ops.append(cur.strip())
        self.mods = ''
        if ops:
            parts = ops[-1].split(None, 1)
            ops[-1] = parts[0]
            self.mods = parts[1] if len(parts) > 1 else ''
        self.ops = ops
        op = self.op
        self.label = op.endswith(':')
        self.valu = op.startswith('v_') and not op.startswith('v_mfma')
        self.mfma = op.startswith('v_mfma')
        self.trans = op.replace('_e32','').replace('_e64','') in TRANS
        self.dpp = '_dpp' in op
        self.sdwa = '_sdwa' in op
        self.permlane = op.startswith('v_permlane')
        self.readlane = op.startswith('v_readlane') or op.startswith('v_readfirstlane')
        self.dot = op.startswith('v_dot')
        self.vmem = op.startswith('global_') or op.startswith('buffer_') or op.startswith('flat_')
        self.ds = op.startswith('ds_')
        self.salu = op.startswith('s_')
        self.w, self.r = set(), set()
        self.srcC = set(); self.srcAB = set(); self.stdata = set()
        R = [_regs(o) for o in ops]
        if self.mfma:
            self.w = R[0]; self.srcAB = R[1] | R[2]; self.srcC = R[3]; self.r = self.srcAB | self.srcC
            self.passes = 8 if '32x32' in op else 4
        elif self.valu:
            if op.startswith('v_cmp'):
                self.w = R[0]; self.r = set().union(*R[1:])
                if op.startswith('v_cmpx'): self.w |= {('s','exec')}
            elif self.permlane:
                self.w = R[0] | R[1]; self.r = R[0] | R[1]
            elif op.startswith(('v_add_co','v_sub_co','v_addc_co','v_subb_co','v_mad_u64_u32')):
                self.w = R[0] | R[1]; self.r = set().union(*R[2:])
            else:
                self.w = R[0]; self.r = set().union(*R[1:]) if len(R) > 1 else set()
                if op.startswith(('v_fmac','v_dot2c','v_writelane','v_pk_fmac')) or self.dpp or self.sdwa: self.r |= R[0]
                if op.startswith('v_cndmask') and len(ops) == 3: self.r |= {('s','vcc')}
        elif self.vmem:
            if 'load' in op and 'lds' not in self.mods.split():
                self.w = R[0]; self.r = set().union(*R[1:])
                if 'd16' in op: self.r |= R[0]
            else:
                self.r = set().union(*R) if R else set()
                if 'store' in op and ('x3' in op or 'x4' in op):
                    self.stdata = R[1] if op.startswith('global_') else R[0]
        elif self.ds:
            if op.startswith(('ds_read','ds_bpermute','ds_permute','ds_swizzle')):
                self.w = R[0]; self.r = set().union(*R[1:])
                if 'd16' in op: self.r |= R[0]
            else:
                self.r = set().union(*R)
        elif self.salu:
            if op.startswith(('s_cmp','s_cbranch','s_branch','s_waitcnt','s_barrier','s_nop','s_endpgm','s_sleep','s_setprio','s_setpc')):
                self.r = set().union(*R) if R else set()
            else:
                self.w = R[0] if R else set(); self.r = set().union(*R[1:]) if len(R) > 1 else set()
                if 'saveexec' in op: self.w |= {('s','exec')}
    def states(self):
        if self.label or not self.op or self.op.startswith('.'): return 0
        if self.op == 's_nop': return int(self.ops[0], 0) + 1
        return 1
def need(p, c):
    n = 0
    vw = {x for x in p.w if x[0] in 'va'}
    sw = {x for x in p.w if x[0] == 's'}
    if p.valu:
        if vw & c.r:
            if c.dpp: n = max(n, 2)
            if c.permlane: n = max(n, 2)
            if c.readlane: n = max(n, 1)
            if c.mfma: n = max(n, 2)
            if p.trans and c.valu and not c.trans: n = max(n, 1)
            if p.trans and (c.trans or c.vmem or c.ds): n = max(n, 1)
            if p.sdwa and c.valu: n = max(n, 1)
            if p.dot and not (c.op == p.op and (vw & c.r) == (vw & _regs(c.ops[3]) if len(c.ops) > 3 else set()) and not (vw & (_regs(c.ops[1]) | _regs(c.ops[2])))): n = max(n, 3)
        if p.dot and (vw & c.w) and c.op != p.op: n = max(n, 3)
        if sw & c.r:
            if c.valu: n = max(n, 4 if c.op.startswith(('v_readlane','v_writelane')) else 2)
            if c.vmem: n = max(n, 5)
            if c.salu and not c.op.startswith('s_cbranch'): n = max(n, 1)
        if ('s','exec') in sw:
            if c.dpp: n = max(n, 5)
            if c.mfma or c.permlane or c.readlane: n = max(n, 4)
    if p.mfma:
        big = 8 if p.passes == 4 else 12
        if c.mfma:
            if p.w & c.srcAB: n = max(n, big)
            if p.w & c.srcC and not (p.w == c.srcC and p.passes == c.passes): n = max(n, big - 2)
            if (p.w & c.w) and not (p.w == c.srcC): n = max(n, big - 2)
        elif (p.w & (c.r | c.w)) and (c.valu or c.vmem or c.ds): n = max(n, big)
        if c.valu and (p.srcC & c.w): n = max(n, 3 if p.passes == 4 else 7)
    if p.stdata and (p.stdata & c.w): n = max(n, 2 if c.valu else 1)
    if p.salu and ('s','m0') in p.w and c.vmem and 'lds' in c.mods.split(): n = max(n, 1)
    return n
class Asm:
    def __init__(self):
        self.lines = []
    def __call__(self, text):
        for l in text.split('\n'):
            l = l.strip()
            if l: self.lines.append(l)
    def c(self, text): self.lines.append('; ' + text)
    def finish(self):
        out = []; hist = []
        nn = 0
        for l in self.lines:
            if l.startswith(';') or l.startswith('.'):
                out.append(l); continue
            ins = Ins(l)
            if ins.label:
                out.append(l); continue
            req = 0; dist = 0
            for p in reversed(hist):
                k = need(p, ins) - dist
                if k > req: req = k
                dist += p.states()
                if dist > 24: break
            if req > 0:
                nop = Ins('s_nop %d' % (req - 1)); out.append('    ' + nop.text); hist.append(nop); nn += 1
            out.append('    ' + l); hist.append(ins)
            if len(hist) > 40: hist = hist[-40:]
        return '\n'.join(out) + '\n'
```

```python
import sys
from asmgen import Asm
NAME = 'interleave_layers__ssm_conv_h3__ssm_conv_s4__prompt'
def generate(stamps=False, opts=None):
    o = dict(prefetch=1)
    if opts: o.update(opts)
    a = Asm()
    RSTR = 8320
    XSTR = 256 * RSTR
    FA0, FSTR = 0, 4160
    FB0 = 2 * FSTR
    GBUF, GSTR = 16640, 4608
    FLG, FLP = 25856, 25888
    RIN, ROUT, ROSTR = 26112, 34304, 1088
    PBUF = 43008
    PA, PB, PWR, PWI = PBUF, PBUF + 1024, PBUF + 2048, PBUF + 3072
    QF, T16, TSTR = PBUF + 4096, PBUF + 20480, 6144
    LDS = 75776
    SPIN = 400000
    sW, sWave, sCP, sSpin, sEp = 's2', 's3', 's4', 's12', 's13'
    sD0, sD1 = 's14', 's15'
    P = lambda i: 's[%d:%d]' % (16 + 2 * i, 17 + 2 * i)
    pQ, pK, pV, pSK, pSSMK, pSSMD, pU, pARE, pAIM, pBRE, pBIM, pCRE, pCIM, pLDT, pDSK, pOUT, pDBG, pWS = [P(i) for i in range(18)]
    sX = 's[52:53]'
    sDB = 's54'
    vTid, vLane = 'v0', 'v1'
    vRowIn, vRowOut, vRinW, vRowRd, vRoutW, vTr = 'v2', 'v3', 'v4', 'v5', 'v6', 'v7'
    X, Y, N = 16, 24, 32
    T = 40
    G0, G1, ACC, F = 64, 80, 96, 128
    v = lambda i: 'v%d' % i
    vr = lambda i, n: 'v[%d:%d]' % (i, i + n - 1)
    nst = [0]
    def stamp():
        if not stamps: return
        i = nst[0]; nst[0] += 1
        a('s_memrealtime s[60:61]\ns_waitcnt lgkmcnt(0)\ns_mov_b32 s%d, s60' % (70 + i))
    lab = [0]
    def L(p='L'):
        lab[0] += 1; return '%s_%d' % (p, lab[0])
    def spin_guard(top):
        a('s_sub_u32 %s, %s, 1\ns_cbranch_scc1 L_exit\ns_branch %s' % (sSpin, sSpin, top))
    def poll(dst, voff, extra=''):
        top, done = L('Lp'), L('Lpd')
        a('%s:' % top)
        a('global_load_dwordx4 %s, %s, %s %s sc1' % (vr(dst, 4), voff, sX, extra))
        a('s_waitcnt vmcnt(0)')
        a('v_max3_u32 v%d, v%d, v%d, v%d' % (T + 20, dst, dst + 1, dst + 2))
        a('v_max_u32 v%d, v%d, v%d' % (T + 20, T + 20, dst + 3))
        a('v_cmp_eq_u32 vcc, -1, v%d' % (T + 20))
        a('s_cbranch_vccz %s' % done)
        spin_guard(top)
        a('%s:' % done)
    def unpack(dst, src, n):
        for i in range(n):
            a('v_lshlrev_b32 v%d, 16, v%d' % (dst + 2 * i, src + i))
            a('v_and_b32 v%d, 0xffff0000, v%d' % (dst + 2 * i + 1, src + i))
    def ln(src, dst, t):
        a('v_pk_add_f32 %s, %s, %s' % (vr(t, 2), vr(src, 2), vr(src + 2, 2)))
        a('v_pk_mul_f32 %s, %s, %s' % (vr(t + 4, 2), vr(src, 2), vr(src, 2)))
        a('v_pk_add_f32 %s, %s, %s' % (vr(t + 2, 2), vr(src + 4, 2), vr(src + 6, 2)))
        a('v_pk_fma_f32 %s, %s, %s, %s' % (vr(t + 4, 2), vr(src + 2, 2), vr(src + 2, 2), vr(t + 4, 2)))
        a('v_pk_add_f32 %s, %s, %s' % (vr(t, 2), vr(t, 2), vr(t + 2, 2)))
        a('v_pk_fma_f32 %s, %s, %s, %s' % (vr(t + 4, 2), vr(src + 4, 2), vr(src + 4, 2), vr(t + 4, 2)))
        a('v_add_f32 v%d, v%d, v%d' % (t, t, t + 1))
        a('v_pk_fma_f32 %s, %s, %s, %s' % (vr(t + 4, 2), vr(src + 6, 2), vr(src + 6, 2), vr(t + 4, 2)))
        a('v_add_f32 v%d, v%d, v%d' % (t + 4, t + 4, t + 5))
        a('v_permlane32_swap_b32 v%d, v%d' % (t, t + 4))
        a('v_add_f32 v%d, v%d, v%d' % (t, t, t + 4))
        for r in (8, 4, 2, 1):
            a('v_add_f32_dpp v%d, v%d, v%d row_ror:%d row_mask:0xf bank_mask:0xf' % (t, t, t, r))
        a('v_add_f32_dpp v%d, v%d, v%d row_bcast:15 row_mask:0xa bank_mask:0xf' % (t, t, t))
        a('v_readlane_b32 s62, v%d, 31' % t)
        a('v_readlane_b32 s63, v%d, 63' % t)
        a('v_ldexp_f32 v%d, s62, -9' % t)
        a('v_ldexp_f32 v%d, s63, -9' % (t + 2))
        a('v_fma_f32 v%d, -v%d, v%d, v%d' % (t + 2, t, t, t + 2))
        a('v_max_f32 v%d, 0, v%d' % (t + 2, t + 2))
        a('v_add_f32 v%d, 0x3727c5ac, v%d' % (t + 2, t + 2))
        a('v_rsq_f32 v%d, v%d' % (t + 2, t + 2))
        a('v_mul_f32 v%d, v%d, -v%d' % (t, t, t + 2)) if False else a('v_mul_f32_e64 v%d, v%d, -v%d' % (t, t, t + 2))
        for i in range(0, 8, 2):
            a('v_pk_fma_f32 %s, %s, %s, %s op_sel_hi:[1,0,0]' % (vr(dst + i, 2), vr(src + i, 2), vr(t + 2, 2), vr(t, 2)))
    def send(src):
        for i in range(4):
            a('v_cvt_pk_bf16_f32 v%d, v%d, v%d' % (T + i, src + 2 * i, src + 2 * i + 1))
        a('ds_write_b128 %s, %s' % (vRoutW, vr(T, 4)))
        a('s_waitcnt lgkmcnt(0)\ns_barrier')
        a('ds_read_b64_tr_b16 %s, %s offset:%d' % (vr(T + 4, 2), vTr, 4 * ROSTR))
        a('ds_read_b64_tr_b16 %s, %s' % (vr(T + 6, 2), vTr))
        a('s_waitcnt lgkmcnt(0)')
        for i in range(4):
            a('v_min_u32 v%d, -2, v%d' % (T + 4 + i, T + 4 + i))
        a('global_store_dwordx4 %s, %s, %s sc1' % (vRowOut, vr(T + 4, 4), sX))
    def load_F(base):
        for rho in range(4):
            for m in range(8):
                a('ds_read_b128 %s, v10 offset:%d' % (vr(F + (rho * 8 + m) * 4, 4), base + 512 * m + 64 * rho))

    a('s_cmp_ge_u32 s2, 256\ns_cbranch_scc1 L_exit')
    a('s_load_dwordx16 s[16:31], s[0:1], 0\ns_load_dwordx16 s[32:47], s[0:1], 64\ns_load_dwordx4 s[48:51], s[0:1], 128')
    a('v_lshrrev_b32 v40, 6, v0\nv_and_b32 v1, 63, v0\nv_mov_b32 v13, 0')
    a('v_readfirstlane_b32 s3, v40')
    a('s_and_b32 s4, s2, 7\ns_lshl_b32 s4, s4, 5\ns_lshr_b32 s5, s2, 3\ns_add_u32 s4, s4, s5')
    a('s_mov_b32 %s, %d\ns_mov_b32 %s, 1' % (sSpin, SPIN, sEp))
    a('s_lshl_b32 s6, s2, 3\ns_add_u32 s6, s6, s3')
    a('s_lshl_b32 s6, s6, 10')
    a('v_lshl_add_u32 v41, v1, 4, s6')
    a('v_lshlrev_b32 v42, 6, v1')
    a('v_mov_b32 v44, -1\nv_mov_b32 v45, -1\nv_mov_b32 v46, -1\nv_mov_b32 v47, -1')
    a('s_mul_i32 s7, s2, %d\ns_mul_i32 s55, s4, %d' % (RSTR, RSTR))
    a('s_waitcnt lgkmcnt(0)')
    stamp()
    a('s_mov_b32 s52, s50\ns_mov_b32 s53, s51')
    a('s_mov_b32 s8, s18\ns_mov_b32 s9, s19\ns_mov_b32 s10, 0x200000\ns_mov_b32 s11, 0x20000')
    a('s_cmp_lt_u32 s3, 6\ns_cbranch_scc1 L_noclr')
    a('s_add_u32 s56, s55, %d' % XSTR)
    a('s_cmp_eq_u32 s3, 7\ns_cselect_b32 s56, s7, s56')
    a('s_add_u32 s56, s56, 4096')
    a('v_lshl_add_u32 v43, v1, 4, s56')
    for i in range(8):
        a('global_store_dwordx4 v43, v[44:47], %s offset:%d sc1' % (sX, i * 1024 - 4096))
    a('L_noclr:')
    a('s_cmp_ge_u32 s3, 4\ns_cbranch_scc1 L_nopar')
    a('s_lshl_b32 s56, s4, 9')
    a('v_lshl_add_u32 v43, v0, 1, s56')
    a('v_lshrrev_b32 v48, 7, v0\ns_lshl_b32 s56, s4, 2\nv_lshl_add_u32 v48, v48, 1, s56')
    for i in range(7): a('v_mov_b32 v%d, 0' % (G0 + i))
    for i, p in enumerate([pARE, pAIM, pBRE, pBIM, pCRE, pCIM]):
        a('global_load_short_d16_hi v%d, v43, %s' % (G0 + i, p))
    a('global_load_short_d16_hi v%d, v48, %s' % (G0 + 6, pLDT))
    a('L_nopar:')
    KR, VR, SK, X0, SS = 96, 112, 80, 116, 120
    a('buffer_load_dwordx4 %s, v41, s[8:11], 0 offen' % vr(KR, 4))
    for j in (1, 2, 3):
        a('v_add_u32 v%d, %d, v41' % (48 + j, -1024 * j))
        a('buffer_load_dwordx4 %s, v%d, s[8:11], 0 offen' % (vr(KR + 4 * j, 4), 48 + j))
    a('global_load_dwordx4 %s, v41, %s' % (vr(VR, 4), pV))
    for j in range(4):
        a('global_load_dwordx4 %s, v42, %s offset:%d' % (vr(SK + 4 * j, 4), pSK, 16 * j))
    a('global_load_dwordx4 %s, v41, %s' % (vr(X0, 4), pQ))
    a('s_lshl_b32 s56, s4, 13\nv_lshl_add_u32 v43, v0, 4, s56')
    a('global_load_dwordx4 %s, v43, %s' % (vr(SS, 4), pSSMK))
    NL = 11
    npre = 0
    if o['prefetch']:
        a('s_getpc_b64 s[56:57]')
        a('v_lshlrev_b32 v52, 5, v0\nv_mov_b32 v53, s57\nv_add_co_u32 v52, vcc, s56, v52\nv_addc_co_u32 v53, vcc, 0, v53, vcc')
        a('global_load_dword v124, v[52:53], off')
        npre = 1
    a('s_lshl_b32 s56, s4, 2')
    a('s_load_dword s57, %s, s56\ns_load_dword %s, %s, s56' % (pSSMD, sDB, pDSK))
    a('s_lshr_b32 s5, s2, 5\ns_and_b32 s56, s2, 31')
    a('s_and_b32 s58, s56, 7\ns_lshl_b32 s58, s58, 2\ns_lshr_b32 s56, s56, 3\ns_add_u32 s56, s56, s58')
    a('s_lshl_b32 s56, s56, 5\ns_lshl_b32 s5, s5, 10\ns_add_u32 s56, s56, s5\ns_add_u32 s56, s56, %d' % XSTR)
    a('v_lshrrev_b32 v40, 1, v0\nv_and_b32 v48, 1, v0')
    a('v_mul_u32_u24 v2, %d, v40' % RSTR)
    a('v_lshl_add_u32 v2, v48, 4, v2\nv_add_u32 v2, s56, v2')
    a('v_lshl_add_u32 v3, v0, 4, s7')
    a('v_lshlrev_b32 v4, 12, v48\nv_lshl_add_u32 v4, v40, 2, v4\nv_add_u32 v4, %d, v4' % RIN)
    a('v_lshlrev_b32 v5, 4, v0\nv_add_u32 v5, %d, v5' % RIN)
    a('s_mul_i32 s56, s3, %d\ns_add_u32 s56, s56, %d\nv_lshl_add_u32 v6, v1, 4, s56' % (ROSTR, ROUT))
    a('v_bfe_u32 v40, v0, 2, 2\nv_sub_u32 v40, 3, v40\nv_mul_u32_u24 v7, %d, v40' % ROSTR)
    a('v_and_b32 v40, 0x1f0, v0\nv_lshl_add_u32 v7, v40, 1, v7')
    a('v_and_b32 v40, 3, v0\nv_lshl_add_u32 v7, v40, 3, v7\nv_add_u32 v7, %d, v7' % ROUT)
    a('v_and_b32 v40, 15, v1\nv_lshrrev_b32 v48, 4, v1')
    a('s_cmp_ge_u32 s3, 4\ns_cbranch_scc1 L_hadr')
    a('s_lshr_b32 s56, s3, 1\ns_and_b32 s58, s3, 1')
    a('s_mul_i32 s59, s56, %d\ns_lshl_b32 s60, s58, 8\ns_sub_u32 s59, s59, s60\ns_add_u32 s59, s59, %d' % (GSTR, GBUF + 16 * 33 - 192))
    a('v_lshlrev_b32 v8, 1, v40\nv_sub_u32 v8, v8, v48\nv_lshl_add_u32 v8, v8, 4, s59')
    a('s_lshl_b32 s59, s3, 10\ns_add_u32 s59, s59, %d\nv_lshl_add_u32 v9, v1, 4, s59' % PBUF)
    a('s_mul_i32 s59, s56, %d\ns_add_u32 s59, s59, s60\ns_add_u32 s59, s59, 2' % FSTR)
    a('v_lshl_add_u32 v10, v48, 3, v40\nv_lshl_add_u32 v10, v10, 1, s59')
    a('s_lshl_b32 s59, s3, 2\ns_add_u32 s59, s59, %d\nv_mov_b32 v11, s59' % FLP)
    a('v_mov_b32 v12, %d' % FLG)
    a('v_mov_b32 v44, 0\nv_mov_b32 v45, 0\nv_mov_b32 v46, 0\nv_mov_b32 v47, 0')
    a('s_cmp_eq_u32 s3, 0\ns_cbranch_scc0 L_z1')
    a('v_lshrrev_b32 v49, 5, v1\nv_mul_u32_u24 v49, %d, v49\nv_and_b32 v50, 31, v1\nv_lshl_add_u32 v49, v50, 4, v49' % GSTR)
    a('ds_write_b128 v49, v[44:47] offset:%d' % GBUF)
    a('L_z1:')
    a('s_cmp_eq_u32 s3, 1\ns_cbranch_scc0 L_adr_done')
    a('v_lshrrev_b32 v49, 1, v1\nv_and_b32 v49, 3, v49\nv_mul_u32_u24 v49, %d, v49\nv_and_b32 v50, 1, v1\nv_lshl_add_u32 v49, v50, 4, v49' % FSTR)
    a('ds_write_b128 v49, v[44:47]')
    a('v_min_u32 v49, 9, v1\nv_lshlrev_b32 v49, 4, v49')
    a('ds_write_b128 v49, v[44:47] offset:%d' % FLG)
    a('s_branch L_adr_done')
    a('L_hadr:')
    a('s_sub_u32 s56, s3, 4')
    a('v_lshrrev_b32 v49, 1, v1\nv_and_b32 v50, 1, v1')
    a('s_mul_i32 s58, s56, %d\ns_lshl_b32 s59, s4, 5\ns_add_u32 s58, s58, s59' % (32 * RSTR))
    a('v_mul_u32_u24 v8, %d, v49\nv_lshl_add_u32 v8, v50, 4, v8\nv_add_u32 v8, s58, v8' % RSTR)
    a('v_add_u32 v13, %d, v8' % (128 * RSTR))
    a('s_lshl_b32 s58, s56, 9\ns_add_u32 s58, s58, %d' % (GBUF + 512))
    a('v_mul_u32_u24 v9, %d, v50\nv_lshl_add_u32 v9, v49, 4, v9\nv_add_u32 v9, s58, v9' % GSTR)
    a('v_lshrrev_b32 v51, 2, v49\nv_and_b32 v52, 3, v49\nv_lshl_add_u32 v51, v52, 3, v51')
    a('v_lshl_add_u32 v52, v51, 1, v50')
    a('v_and_b32 v53, 3, v52\nv_lshrrev_b32 v52, 2, v52\nv_lshl_add_u32 v52, v53, 4, v52')
    a('s_lshl_b32 s59, s56, 12\ns_add_u32 s59, s59, %d\nv_lshl_add_u32 v10, v52, 4, s59' % PBUF)
    a('v_sub_u32 v53, 1, v50\nv_lshlrev_b32 v53, 3, v53\nv_lshl_add_u32 v11, v51, 4, v53\nv_add_u32 v11, s58, v11')
    a('s_lshl_b32 s59, s56, 10\ns_add_u32 s59, s59, s55\ns_add_u32 s59, s59, %d\nv_lshl_add_u32 v12, v1, 4, s59' % (XSTR + 2048))
    a('s_lshl_b32 s59, s56, 4\ns_add_u32 s59, s59, %d\nv_mov_b32 v14, s59' % FLP)
    a('s_lshl_b32 s59, s56, 2\ns_add_u32 s59, s59, %d\nv_mov_b32 v15, s59' % FLG)
    a('s_cmp_eq_u32 s3, 7\ns_cbranch_scc0 L_adr_done')
    a('s_waitcnt vmcnt(%d)' % (NL + npre))
    a('v_mov_b32 v49, s2\nv_mov_b32 v50, 1\ns_mov_b64 exec, 1')
    a('global_store_byte v49, v50, %s sc1' % pDBG)
    a('s_mov_b64 exec, -1')
    a('L_adr_done:')
    a('s_cmp_ge_u32 s3, 4\ns_cbranch_scc1 L_noprep')
    a('s_waitcnt vmcnt(%d)' % (NL + npre))
    g = G0
    a('v_mul_f32 v%d, 0x3fb8aa3b, v%d' % (g + 6, g + 6))
    a('v_exp_f32 v%d, v%d' % (g + 6, g + 6))
    a('v_cvt_pk_bf16_f32 v%d, v%d, v%d' % (g + 6, g + 6, g + 6))
    a('v_lshlrev_b32 v%d, 16, v%d' % (g + 6, g + 6))
    a('v_mul_f32 v%d, v%d, v%d\nv_mul_f32 v%d, v%d, v%d' % (g, g, g + 6, g + 1, g + 1, g + 6))
    a('v_mul_f32 v%d, 0x3fb8aa3b, v%d\nv_mul_f32 v%d, 0x3e22f983, v%d' % (g, g, g + 1, g + 1))
    a('v_mul_f32 v%d, v%d, v%d\nv_mul_f32 v%d, v%d, v%d' % (g + 2, g + 2, g + 6, g + 3, g + 3, g + 6))
    a('v_mul_f32 v%d, v%d, v%d' % (g + 7, g + 4, g + 2))
    a('v_fma_f32 v%d, -v%d, v%d, v%d' % (g + 7, g + 5, g + 3, g + 7))
    a('v_mul_f32 v%d, v%d, v%d' % (g + 8, g + 4, g + 3))
    a('v_fma_f32 v%d, v%d, v%d, v%d' % (g + 8, g + 5, g + 2, g + 8))
    a('v_lshlrev_b32 v49, 2, v0')
    a('ds_write2st64_b32 v49, v%d, v%d offset0:%d offset1:%d' % (g, g + 1, PA // 256, PB // 256))
    a('ds_write2st64_b32 v49, v%d, v%d offset0:%d offset1:%d' % (g + 7, g + 8, PWR // 256, PWI // 256))
    a('L_noprep:')
    a('s_mov_b32 s56, 0x05040100\ns_mov_b32 s58, 0x07060302')
    a('s_waitcnt vmcnt(%d)' % (2 + npre))
    stamp()
    KS = 48
    for i in range(4):
        for hl, sel in ((0, 's56'), (1, 's58')):
            ch = 2 * i + hl
            a('v_perm_b32 v%d, v%d, v%d, %s' % (56 + 2 * hl, KR + 4 + i, KR + i, sel))
            a('v_perm_b32 v%d, v%d, v%d, %s' % (57 + 2 * hl, KR + 12 + i, KR + 8 + i, sel))
        for hl in (0, 1):
            ch = 2 * i + hl
            a('v_dot2_f32_bf16 v%d, v%d, v%d, 0' % (KS + ch, 56 + 2 * hl, SK + 2 * ch))
        for hl in (0, 1):
            ch = 2 * i + hl
            a('v_dot2_f32_bf16 v%d, v%d, v%d, v%d' % (KS + ch, 57 + 2 * hl, SK + 2 * ch + 1, KS + ch))
    unpack(KR, VR, 4)
    for i in range(0, 8, 2):
        a('v_pk_mul_f32 %s, %s, %s' % (vr(KS + i, 2), vr(KS + i, 2), vr(KR + i, 2)))
    send(KS)
    stamp()
    a('v_add_u32 v3, %d, v3' % (2 * XSTR))
    a('v_mov_b32 v44, -1\nv_mov_b32 v45, -1\nv_mov_b32 v46, -1\nv_mov_b32 v47, -1')
    a('v_lshl_add_u32 v48, v0, 4, s55\nv_add_u32 v48, %d, v48\nv_add_u32 v49, %d, v48\nv_add_u32 v50, %d, v3' % (3 * XSTR, 2 * XSTR, 2 * XSTR))
    a('s_waitcnt vmcnt(%d)' % (1 + npre))
    a('v_lshrrev_b32 v51, 8, v0\nv_mul_u32_u24 v51, %d, v51\nv_and_b32 v52, 255, v0\nv_lshl_add_u32 v51, v52, 4, v51' % FSTR)
    a('ds_write_b128 v51, %s offset:%d' % (vr(SS, 4), FA0 + 32))
    for r in ('v3', 'v48', 'v50', 'v49'):
        a('global_store_dwordx4 %s, v[44:47], %s sc1' % (r, sX))
    unpack(X, X0, 4)
    ln(X, N, 52)
    a('s_lshl_b32 %s, s57, 16\ns_and_b32 %s, s57, 0xffff0000' % (sD0, sD1))
    a('s_waitcnt lgkmcnt(0)\ns_barrier')
    a('s_cmp_ge_u32 s3, 4\ns_cbranch_scc1 L_noFA')
    load_F(FA0)
    a('L_noFA:')
    a('s_lshr_b32 s56, s3, 2\ns_add_u32 s58, s3, s56\ns_and_b32 s58, s58, 3')
    a('v_and_b32 v40, 15, v1\nv_lshrrev_b32 v41, 4, v1')
    a('s_cmp_eq_u32 s58, 0\ns_cbranch_scc0 L_k1')
    a('v_lshrrev_b32 v42, 3, v40\nv_and_b32 v43, 7, v40\nv_lshl_add_u32 v42, v42, 7, v43\ns_branch L_kx')
    a('L_k1:\ns_cmp_eq_u32 s58, 1\ns_cbranch_scc0 L_k2')
    a('v_lshrrev_b32 v42, 2, v40\nv_and_b32 v43, 3, v40\nv_lshlrev_b32 v43, 1, v43\nv_lshl_add_u32 v42, v42, 7, v43\nv_add_u32 v42, 256, v42')
    a('v_lshrrev_b32 v43, 1, v40\nv_and_b32 v44, 1, v40\nv_lshlrev_b32 v44, 2, v44\nv_lshl_add_u32 v43, v43, 7, v44')
    a('v_cmp_gt_u32 vcc, 8, v40\nv_cndmask_b32 v42, v43, v42, vcc\ns_branch L_kx')
    a('L_k2:\ns_cmp_eq_u32 s58, 2\ns_cbranch_scc0 L_k3')
    a('v_lshlrev_b32 v42, 7, v40\nv_add_u32 v42, 1024, v42\ns_branch L_kx')
    a('L_k3:\nv_lshlrev_b32 v42, 3, v40')
    a('L_kx:')
    a('v_cvt_f32_u32 v44, v42')
    a('s_lshl_b32 s59, s56, 9\nv_lshl_add_u32 v43, v41, 4, s59')
    a('s_lshl_b32 s59, s56, 13\ns_add_u32 s59, s59, %d\nv_lshl_add_u32 v46, v1, 4, s59' % QF)
    A_, B_, C_, S_ = 48, 52, 56, 60
    def kvals(s, isq):
        a('ds_read_b128 %s, v43 offset:%d' % (vr(A_, 4), PA + 64 * s))
        a('ds_read_b128 %s, v43 offset:%d' % (vr(B_, 4), PB + 64 * s))
        if isq:
            a('ds_read_b128 %s, v43 offset:%d' % (vr(96, 4), PWR + 64 * s))
            a('ds_read_b128 %s, v43 offset:%d' % (vr(100, 4), PWI + 64 * s))
        a('s_waitcnt lgkmcnt(%d)' % (2 if isq else 0))
        for i in (0, 2):
            a('v_pk_mul_f32 %s, %s, v[44:45] op_sel_hi:[1,0]' % (vr(B_ + i, 2), vr(B_ + i, 2)))
            a('v_pk_mul_f32 %s, %s, v[44:45] op_sel_hi:[1,0]' % (vr(A_ + i, 2), vr(A_ + i, 2)))
        for i in range(4): a('v_fract_f32 v%d, v%d' % (B_ + i, B_ + i))
        for i in range(4): a('v_exp_f32 v%d, v%d' % (A_ + i, A_ + i))
        for i in range(4): a('v_cos_f32 v%d, v%d' % (C_ + i, B_ + i))
        for i in range(4): a('v_sin_f32 v%d, v%d' % (S_ + i, B_ + i))
        if not isq:
            for i in (0, 2):
                a('v_pk_mul_f32 %s, %s, %s' % (vr(C_ + i, 2), vr(C_ + i, 2), vr(A_ + i, 2)))
                a('v_pk_mul_f32 %s, %s, %s' % (vr(S_ + i, 2), vr(S_ + i, 2), vr(A_ + i, 2)))
            for i in range(4):
                a('v_cvt_pk_bf16_f32 v%d, v%d, v%d' % (64 + 4 * s + i, C_ + i, S_ + i))
        else:
            a('s_waitcnt lgkmcnt(0)')
            for i in (0, 2):
                a('v_pk_mul_f32 %s, %s, %s' % (vr(96 + i, 2), vr(96 + i, 2), vr(A_ + i, 2)))
                a('v_pk_mul_f32 %s, %s, %s' % (vr(100 + i, 2), vr(100 + i, 2), vr(A_ + i, 2)))
            for i in (0, 2):
                a('v_pk_mul_f32 %s, %s, %s' % (vr(A_ + i, 2), vr(96 + i, 2), vr(C_ + i, 2)))
                a('v_pk_mul_f32 %s, %s, %s' % (vr(B_ + i, 2), vr(96 + i, 2), vr(S_ + i, 2)))
            for i in (0, 2):
                a('v_pk_fma_f32 %s, %s, %s, %s neg_lo:[1,0,0] neg_hi:[1,0,0]' % (vr(A_ + i, 2), vr(100 + i, 2), vr(S_ + i, 2), vr(A_ + i, 2)))
                a('v_pk_fma_f32 %s, %s, %s, %s' % (vr(B_ + i, 2), vr(100 + i, 2), vr(C_ + i, 2), vr(B_ + i, 2)))
            for i in range(4):
                a('v_cvt_pk_bf16_f32 v%d, v%d, -v%d' % (104 + i, A_ + i, B_ + i))
            a('ds_write_b128 v46, %s offset:%d' % (vr(104, 4), 1024 * s))
    a('s_cmp_eq_u32 s58, 3\ns_cbranch_scc1 L_kq')
    for s in range(8): kvals(s, False)
    a('s_branch L_kdone')
    a('L_kq:')
    for s in range(8): kvals(s, True)
    a('L_kdone:')
    a('s_waitcnt lgkmcnt(0)\ns_barrier')
    stamp()
    a('s_cmp_eq_u32 s58, 3\ns_cbranch_scc1 L_kskip')
    for s in range(8): a('ds_read_b128 %s, v46 offset:%d' % (vr(96 + 4 * s, 4), 1024 * s))
    a('v_lshlrev_b32 v47, 4, v41')
    for r in range(4): a('ds_bpermute_b32 v%d, v47, v42 offset:%d' % (48 + r, 4 * r))
    a('s_mul_i32 s59, s56, %d\ns_add_u32 s59, s59, %d\nv_lshl_add_u32 v47, v40, 4, s59' % (TSTR, T16))
    a('s_waitcnt lgkmcnt(0)')
    for s in range(8):
        a('v_mfma_f32_16x16x32_bf16 v[52:55], %s, %s, %s' % (vr(64 + 4 * s, 4), vr(96 + 4 * s, 4), '0' if s == 0 else 'v[52:55]'))
    for r in range(4): a('v_lshl_add_u32 v%d, v%d, 1, v47' % (48 + r, 48 + r))
    a('v_cvt_pk_bf16_f32 v56, v52, v53\nv_cvt_pk_bf16_f32 v57, v54, v55')
    a('ds_write_b16 v48, v56\nds_write_b16_d16_hi v49, v56\nds_write_b16 v50, v57\nds_write_b16_d16_hi v51, v57')
    a('L_kskip:')
    a('v_and_b32 v40, 255, v0\nv_lshlrev_b32 v41, 3, v40\nv_cvt_f32_u32 v48, v41')
    for e in range(1, 8): a('v_add_f32 v%d, %s, v48' % (48 + e, ['', '1.0', '2.0', '0x40400000', '4.0', '0x40a00000', '0x40c00000', '0x40e00000'][e]))
    for e in range(0, 8, 2): a('v_cvt_pk_bf16_f32 v%d, v%d, v%d' % (56 + e // 2, 48 + e, 49 + e))
    unpack(48, 56, 4)
    a('v_lshrrev_b32 v41, 8, v0\nv_mul_u32_u24 v42, %d, v41\nv_add_u32 v42, %d, v42' % (TSTR, T16))
    for e in range(8): a('v_cvt_u32_f32 v%d, v%d' % (48 + e, 48 + e))
    for e in range(8): a('v_lshl_add_u32 v%d, v%d, 1, v42' % (48 + e, 48 + e))
    a('v_mul_u32_u24 v41, %d, v41\nv_lshl_add_u32 v41, v40, 4, v41' % FSTR)
    a('s_waitcnt lgkmcnt(0)\ns_barrier')
    for e in range(8): a('ds_read_u16 v%d, v%d' % (64 + e, 48 + e))
    a('s_waitcnt lgkmcnt(0)')
    for e in range(4): a('v_lshl_or_b32 v%d, v%d, 16, v%d' % (56 + e, 65 + 2 * e, 64 + 2 * e))
    a('ds_write_b128 v41, v[56:59] offset:%d' % (FB0 + 32))
    a('s_waitcnt vmcnt(0) lgkmcnt(0)\ns_barrier')
    stamp()
    a('s_cmp_lt_u32 s3, 4\ns_cbranch_scc1 L_loop')
    a('v_lshlrev_b32 v40, 2, v1')
    a('L_w0:\nglobal_load_dword v41, v40, %s sc1\ns_waitcnt vmcnt(0)' % pDBG)
    a('v_cmp_ne_u32 vcc, 0x01010101, v41\ns_cbranch_vccz L_loop')
    spin_guard('L_w0')
    a('L_loop:')
    a('v_mov_b32 v40, %s' % sEp)
    a('s_cmp_ge_u32 s3, 4\ns_cbranch_scc1 L_helper')
    Gs = (G0, G1)
    def gread(b):
        for rho in range(4):
            a('ds_read_b128 %s, v8 offset:%d' % (vr(Gs[b & 1] + 4 * rho, 4), 512 * b + 64 * (3 - rho)))
    def spinG(b):
        top, done = L('Lg'), L('Lgd')
        a('%s:\nds_read_b32 v41, v12 offset:%d\ns_waitcnt lgkmcnt(0)' % (top, 4 * b))
        a('v_cmp_eq_u32 vcc, v40, v41\ns_cbranch_vccnz %s' % done)
        spin_guard(top)
        a('%s:' % done)
    def mm(b, c, rho):
        a('v_mfma_f32_16x16x32_bf16 %s, %s, %s, %s' % (vr(ACC + 4 * c, 4), vr(F + (rho * 8 + c - b) * 4, 4), vr(Gs[b & 1] + 4 * rho, 4),
            '0' if (b == 0 and rho == 0) else vr(ACC + 4 * c, 4)))
    spinG(0)
    gread(0)
    for b in range(8):
        if b < 7: a('ds_read_b32 v42, v12 offset:%d' % (4 * (b + 1)))
        a('s_waitcnt lgkmcnt(%d)' % (1 if b < 7 else 0))
        for rho in range(4): mm(b, b, rho)
        off = [(c, rho) for rho in range(4) for c in range(b + 1, 8)]
        k = 0
        if b < 7:
            skip, late = L('Ls'), L('Ll')
            a('s_waitcnt lgkmcnt(0)')
            a('v_cmp_eq_u32 s[56:57], v40, v42')
            while k < min(2, len(off)): mm(b, *off[k]); k += 1
            a('s_cmp_eq_u64 s[56:57], 0\ns_cbranch_scc1 %s' % skip)
            gread(b + 1)
            a('%s:' % skip)
            while k < min(4, len(off)): mm(b, *off[k]); k += 1
        a('ds_write_b128 v9, %s offset:%d' % (vr(ACC + 4 * b, 4), 4096 * b))
        a('s_mov_b64 exec, 1\nds_write_b32 v11, v40 offset:%d\ns_mov_b64 exec, -1' % (16 * b))
        while k < len(off): mm(b, *off[k]); k += 1
        if b < 7:
            a('s_cmp_eq_u64 s[56:57], 0\ns_cbranch_scc0 %s' % late)
            spinG(b + 1)
            gread(b + 1)
            a('%s:' % late)
    stamp()
    a('s_cmp_eq_u32 %s, 1\ns_cbranch_scc0 L_row' % sEp)
    load_F(FB0)
    a('s_branch L_row')
    a('L_helper:')
    for half in range(2):
        poll(44, 'v8' if half == 0 else 'v13')
        a('ds_write_b128 v9, v[44:47] offset:%d' % (2048 * half))
        a('s_mov_b64 exec, 1\nds_write_b32 v15, v40 offset:%d\ns_mov_b64 exec, -1' % (16 * half))
        top, done = L('Lf'), L('Lfd')
        a('%s:\nds_read_b128 v[44:47], v14 offset:%d\ns_waitcnt lgkmcnt(0)' % (top, 64 * half))
        a('v_min_u32 v44, v44, v45\nv_min3_u32 v44, v44, v46, v47')
        a('v_cmp_eq_u32 vcc, v40, v44\ns_cbranch_vccnz %s' % done)
        spin_guard(top)
        a('%s:' % done)
        for w_ in range(4): a('ds_read_b128 %s, v10 offset:%d' % (vr(64 + 4 * w_, 4), 16384 * half + 1024 * w_))
        for ch in range(2): a('ds_read_b64 %s, v11 offset:%d' % (vr(80 + 2 * ch, 2), 2048 * half + GSTR * ch))
        a('s_waitcnt lgkmcnt(0)')
        for ch in range(2):
            for i in (0, 2):
                a('v_pk_add_f32 %s, %s, %s' % (vr(64 + 8 * ch + i, 2), vr(64 + 8 * ch + i, 2), vr(68 + 8 * ch + i, 2)))
        for ch in range(2):
            u = 84 + 4 * ch
            a('v_and_b32 v%d, 0xffff0000, v%d\nv_lshlrev_b32 v%d, 16, v%d' % (u, 81 + 2 * ch, u + 1, 81 + 2 * ch))
            a('v_and_b32 v%d, 0xffff0000, v%d\nv_lshlrev_b32 v%d, 16, v%d' % (u + 2, 80 + 2 * ch, u + 3, 80 + 2 * ch))
        for ch in range(2):
            for r in range(4):
                a('v_fmac_f32 v%d, %s, v%d' % (64 + 8 * ch + r, (sD0, sD1)[ch], 84 + 4 * ch + r))
        for r in range(4): a('v_cvt_pk_bf16_f32 v%d, v%d, v%d' % (44 + r, 64 + r, 72 + r))
        for r in range(4): a('v_min_u32 v%d, -2, v%d' % (44 + r, 44 + r))
        a('global_store_dwordx4 v12, v[44:47], %s offset:%d sc1' % (sX, -2048 + 4096 * half - (1 if False else 0)) if half == 0 else
          'global_store_dwordx4 v12, v[44:47], %s offset:2048 sc1' % sX)
        if half == 1: stamp()
    a('L_row:')
    poll(44, vRowIn)
    a('ds_write2st64_b32 %s, v44, v45 offset0:0 offset1:4' % vRinW)
    a('ds_write2st64_b32 %s, v46, v47 offset0:8 offset1:12' % vRinW)
    a('s_waitcnt lgkmcnt(0)\ns_barrier')
    stamp()
    a('ds_read_b128 v[44:47], %s' % vRowRd)
    a('s_cmp_eq_u32 %s, 1\ns_cbranch_scc0 L_r23' % sEp)
    a('s_waitcnt lgkmcnt(0)')
    unpack(Y, 44, 4)
    a('s_lshl_b32 %s, %s, 16\ns_and_b32 %s, %s, 0xffff0000' % (sD0, sDB, sD1, sDB))
    a('s_branch L_gate')
    a('L_r23:\ns_waitcnt lgkmcnt(0)')
    unpack(48, 44, 4)
    for i in range(0, 8, 2): a('v_pk_add_f32 %s, %s, %s' % (vr(X + i, 2), vr(X + i, 2), vr(48 + i, 2)))
    a('s_cmp_eq_u32 %s, 3\ns_cbranch_scc1 L_out' % sEp)
    ln(X, N, 52)
    a('L_gate:')
    for i in range(0, 8, 2): a('v_pk_fma_f32 %s, %s, %s, %s' % (vr(X + i, 2), vr(N + i, 2), vr(Y + i, 2), vr(X + i, 2)))
    ln(X, N, 52)
    send(N)
    stamp()
    a('s_add_u32 s52, s52, %d\ns_addc_u32 s53, s53, 0\ns_add_u32 %s, %s, 1' % (2 * XSTR, sEp, sEp))
    if stamps:
        a('s_cmp_eq_u32 %s, 2\ns_cbranch_scc0 L_st3' % sEp)
        for i in range(4): a('s_mov_b32 s%d, s%d' % (80 + i, 75 + i))
        a('s_branch L_loop\nL_st3:')
        for i in range(4): a('s_mov_b32 s%d, s%d' % (84 + i, 75 + i))
    a('s_branch L_loop')
    a('L_out:')
    for i in range(4): a('v_cvt_pk_bf16_f32 v%d, v%d, v%d' % (44 + i, X + 2 * i, X + 2 * i + 1))
    a('v_lshl_add_u32 v41, v1, 4, s6')
    a('global_store_dwordx4 v41, v[44:47], %s' % pOUT)
    if stamps:
        a('s_waitcnt vmcnt(0)')
        a('s_memrealtime s[60:61]\ns_waitcnt lgkmcnt(0)\ns_mov_b32 s79, s60')
        a('s_lshl_b32 s56, s2, 3\ns_add_u32 s56, s56, s3\ns_lshl_b32 s56, s56, 7\ns_add_u32 s56, s56, 0x2000000')
        a('v_mov_b32 v41, s56\ns_mov_b64 exec, 1')
        for i in range(18):
            a('v_mov_b32 v42, s%d\nglobal_store_dword v41, v42, %s offset:%d' % (70 + i, pWS, 4 * i))
    a('L_exit:')
    body = a.finish()
    hdr = open('cdna_kernels/%s.s.ref' % NAME).read().split('; Override launch')[0]
    txt = hdr + '; @launch grid=(256,1,1) block=(512,1,1) lds=%d\n' % LDS
    txt += '.amdgcn_target "amdgcn-amd-amdhsa--gfx950"\n.text\n.globl %s_kernel\n.p2align 8\n.type %s_kernel,@function\n%s_kernel:\n' % (NAME, NAME, NAME)
    txt += body + '    s_endpgm\n'
    txt += '.fill 4096, 4, 0xbf800000\n' if o['prefetch'] else ''
    txt += '''.section .rodata,"a"
.p2align 6
.amdhsa_kernel %s_kernel
  .amdhsa_next_free_vgpr 256
  .amdhsa_next_free_sgpr 102
  .amdhsa_accum_offset 256
  .amdhsa_group_segment_fixed_size 0
  .amdhsa_kernarg_size 144
  .amdhsa_user_sgpr_count 2
  .amdhsa_user_sgpr_kernarg_segment_ptr 1
  .amdhsa_system_sgpr_workgroup_id_x 1
.end_amdhsa_kernel
''' % NAME
    return txt
if __name__ == '__main__':
    out = sys.argv[1] if len(sys.argv) > 1 else 'cdna_kernels/%s.s' % NAME
    open(out, 'w').write(generate(stamps=(len(sys.argv) > 2)))
```

```python
import sys
from asmgen import Asm
NAME = 'interleave_layers__ssm_conv_h3__ssm_conv_s4__prompt'
def generate(stamps=False, opts=None):
    o = dict(prefetch=1, win=4)
    if opts: o.update(opts)
    a = Asm()
    RSTR = 8320
    XSTR = 256 * RSTR
    FSTR = 4160
    FCH = 4 * FSTR
    GBUF, GSTR = 2 * FCH, 4608
    FLG = GBUF + 2 * GSTR
    FLP = FLG + 32
    RIN = FLG + 256
    ROUT, ROSTR = RIN + 8192, 1088
    PBUF = ROUT + 8 * ROSTR
    assert PBUF % 256 == 0 and (PBUF + 3072) // 256 <= 255
    PA, PB, PWR, PWI = PBUF, PBUF + 1024, PBUF + 2048, PBUF + 3072
    QF, T16, TSTR = PBUF + 4096, PBUF + 20480, 6144
    LDS = PBUF + 32768
    SPIN = 400000
    sW, sWave, sCP, sSpin, sEp = 's2', 's3', 's4', 's12', 's13'
    sD0, sD1 = 's14', 's15'
    P = lambda i: 's[%d:%d]' % (16 + 2 * i, 17 + 2 * i)
    pQ, pK, pV, pSK, pSSMK, pSSMD, pU, pARE, pAIM, pBRE, pBIM, pCRE, pCIM, pLDT, pDSK, pOUT, pDBG, pWS = [P(i) for i in range(18)]
    sX = 's[52:53]'
    sDB = 's54'
    vTid, vLane = 'v0', 'v1'
    vRowIn, vRowOut, vRinW, vRowRd, vRoutW, vTr = 'v2', 'v3', 'v4', 'v5', 'v6', 'v7'
    X, Y, N = 16, 24, 32
    T = 40
    G0, G1, ACC, F = 64, 80, 96, 128
    v = lambda i: 'v%d' % i
    vr = lambda i, n: 'v[%d:%d]' % (i, i + n - 1)
    nst = [0]
    def stamp():
        if not stamps: return
        i = nst[0]; nst[0] += 1
        a('s_memrealtime s[60:61]\ns_waitcnt lgkmcnt(0)\ns_mov_b32 s%d, s60' % (70 + i))
    lab = [0]
    def L(p='L'):
        lab[0] += 1; return '%s_%d' % (p, lab[0])
    def spin_guard(top):
        a('s_sub_u32 %s, %s, 1\ns_cbranch_scc1 L_exit\ns_branch %s' % (sSpin, sSpin, top))
    def poll(dst, voff, extra=''):
        top, done = L('Lp'), L('Lpd')
        a('%s:' % top)
        a('global_load_dwordx4 %s, %s, %s %s sc1' % (vr(dst, 4), voff, sX, extra))
        a('s_waitcnt vmcnt(0)')
        a('v_max3_u32 v%d, v%d, v%d, v%d' % (T + 20, dst, dst + 1, dst + 2))
        a('v_max_u32 v%d, v%d, v%d' % (T + 20, T + 20, dst + 3))
        a('v_cmp_eq_u32 vcc, -1, v%d' % (T + 20))
        a('s_cbranch_vccz %s' % done)
        spin_guard(top)
        a('%s:' % done)
    def unpack(dst, src, n):
        for i in range(n):
            a('v_lshlrev_b32 v%d, 16, v%d' % (dst + 2 * i, src + i))
            a('v_and_b32 v%d, 0xffff0000, v%d' % (dst + 2 * i + 1, src + i))
    def ln(src, dst, t):
        a('v_pk_add_f32 %s, %s, %s' % (vr(t, 2), vr(src, 2), vr(src + 2, 2)))
        a('v_pk_mul_f32 %s, %s, %s' % (vr(t + 4, 2), vr(src, 2), vr(src, 2)))
        a('v_pk_add_f32 %s, %s, %s' % (vr(t + 2, 2), vr(src + 4, 2), vr(src + 6, 2)))
        a('v_pk_fma_f32 %s, %s, %s, %s' % (vr(t + 4, 2), vr(src + 2, 2), vr(src + 2, 2), vr(t + 4, 2)))
        a('v_pk_add_f32 %s, %s, %s' % (vr(t, 2), vr(t, 2), vr(t + 2, 2)))
        a('v_pk_fma_f32 %s, %s, %s, %s' % (vr(t + 4, 2), vr(src + 4, 2), vr(src + 4, 2), vr(t + 4, 2)))
        a('v_add_f32 v%d, v%d, v%d' % (t, t, t + 1))
        a('v_pk_fma_f32 %s, %s, %s, %s' % (vr(t + 4, 2), vr(src + 6, 2), vr(src + 6, 2), vr(t + 4, 2)))
        a('v_add_f32 v%d, v%d, v%d' % (t + 4, t + 4, t + 5))
        a('v_permlane32_swap_b32 v%d, v%d' % (t, t + 4))
        a('v_add_f32 v%d, v%d, v%d' % (t, t, t + 4))
        for r in (8, 4, 2, 1):
            a('v_add_f32_dpp v%d, v%d, v%d row_ror:%d row_mask:0xf bank_mask:0xf' % (t, t, t, r))
        a('v_add_f32_dpp v%d, v%d, v%d row_bcast:15 row_mask:0xa bank_mask:0xf' % (t, t, t))
        a('v_readlane_b32 s62, v%d, 31' % t)
        a('v_readlane_b32 s63, v%d, 63' % t)
        a('v_ldexp_f32 v%d, s62, -9' % t)
        a('v_ldexp_f32 v%d, s63, -9' % (t + 2))
        a('v_fma_f32 v%d, -v%d, v%d, v%d' % (t + 2, t, t, t + 2))
        a('v_max_f32 v%d, 0, v%d' % (t + 2, t + 2))
        a('v_add_f32 v%d, 0x3727c5ac, v%d' % (t + 2, t + 2))
        a('v_rsq_f32 v%d, v%d' % (t + 2, t + 2))
        a('v_mul_f32 v%d, v%d, -v%d' % (t, t, t + 2)) if False else a('v_mul_f32_e64 v%d, v%d, -v%d' % (t, t, t + 2))
        for i in range(0, 8, 2):
            a('v_pk_fma_f32 %s, %s, %s, %s op_sel_hi:[1,0,0]' % (vr(dst + i, 2), vr(src + i, 2), vr(t + 2, 2), vr(t, 2)))
    def send(src):
        for i in range(4):
            a('v_cvt_pk_bf16_f32 v%d, v%d, v%d' % (T + i, src + 2 * i, src + 2 * i + 1))
        a('ds_write_b128 %s, %s' % (vRoutW, vr(T, 4)))
        a('s_waitcnt lgkmcnt(0)\ns_barrier')
        a('ds_read_b64_tr_b16 %s, %s offset:%d' % (vr(T + 4, 2), vTr, 4 * ROSTR))
        a('ds_read_b64_tr_b16 %s, %s' % (vr(T + 6, 2), vTr))
        a('s_waitcnt lgkmcnt(0)')
        for i in range(4):
            a('v_min_u32 v%d, -2, v%d' % (T + 4 + i, T + 4 + i))
        a('global_store_dwordx4 %s, %s, %s sc1' % (vRowOut, vr(T + 4, 4), sX))
    def load_F():
        for m in range(8):
            for rho in range(4):
                for q in range(2):
                    a('ds_read_b64 %s, v10 offset:%d' % (vr(F + (rho * 8 + m) * 4 + 2 * q, 2), 512 * m + 64 * rho + 8 * q))
    def build_copies(d, t):
        a('v_lshrrev_b32 v%d, 8, v0\nv_mul_u32_u24 v%d, %d, v%d\nv_and_b32 v%d, 255, v0\nv_lshl_add_u32 v%d, v%d, 4, v%d' % (t + 12, t + 12, FCH, t + 12, t + 13, t + 12, t + 13, t + 12))
        a('ds_write_b128 v%d, %s offset:32' % (t + 12, vr(d, 4)))
        for i in range(4): a('v_alignbit_b32 v%d, v%d, v%d, 16' % (t + i, d + i + 1, d + i))
        a('ds_write_b128 v%d, %s offset:%d' % (t + 12, vr(t, 4), FSTR + 32))
        for i in range(4): a('v_mov_b32 v%d, v%d' % (t + 4 + i, d + i + 1))
        a('ds_write_b128 v%d, %s offset:%d' % (t + 12, vr(t + 4, 4), 2 * FSTR + 32))
        for i in range(3): a('v_mov_b32 v%d, v%d' % (t + 8 + i, t + 1 + i))
        a('v_alignbit_b32 v%d, v%d, v%d, 16' % (t + 11, d + 5, d + 4))
        a('ds_write_b128 v%d, %s offset:%d' % (t + 12, vr(t + 8, 4), 3 * FSTR + 32))
        a('v_cmp_eq_u32 vcc, 0, v%d\nv_lshlrev_b32 v%d, 16, v%d' % (t + 13, t + 13, d))
        a('s_and_saveexec_b64 s[60:61], vcc')
        a('ds_write_b32 v%d, v%d offset:%d' % (t + 12, t + 13, FSTR + 28))
        a('ds_write_b32 v%d, v%d offset:%d' % (t + 12, d, 2 * FSTR + 28))
        a('ds_write_b32 v%d, v%d offset:%d' % (t + 12, t + 13, 3 * FSTR + 24))
        a('ds_write_b32 v%d, v%d offset:%d' % (t + 12, t, 3 * FSTR + 28))
        a('s_mov_b64 exec, s[60:61]')

    a('s_cmp_ge_u32 s2, 256\ns_cbranch_scc1 L_exit')
    a('s_load_dwordx16 s[16:31], s[0:1], 0\ns_load_dwordx16 s[32:47], s[0:1], 64\ns_load_dwordx4 s[48:51], s[0:1], 128')
    a('v_lshrrev_b32 v40, 6, v0\nv_and_b32 v1, 63, v0')
    a('v_readfirstlane_b32 s3, v40')
    a('s_and_b32 s4, s2, 7\ns_lshl_b32 s4, s4, 5\ns_lshr_b32 s5, s2, 3\ns_add_u32 s4, s4, s5')
    a('s_mov_b32 %s, %d\ns_mov_b32 %s, 1' % (sSpin, SPIN, sEp))
    a('s_lshl_b32 s6, s2, 3\ns_add_u32 s6, s6, s3')
    a('s_lshl_b32 s6, s6, 10')
    a('v_lshl_add_u32 v41, v1, 4, s6')
    a('v_lshlrev_b32 v42, 6, v1')
    a('v_mov_b32 v44, -1\nv_mov_b32 v45, -1\nv_mov_b32 v46, -1\nv_mov_b32 v47, -1')
    a('s_mul_i32 s7, s2, %d\ns_mul_i32 s55, s4, %d' % (RSTR, RSTR))
    a('s_waitcnt lgkmcnt(0)')
    stamp()
    a('s_mov_b32 s52, s50\ns_mov_b32 s53, s51')
    a('s_mov_b32 s8, s18\ns_mov_b32 s9, s19\ns_mov_b32 s10, 0x200000\ns_mov_b32 s11, 0x20000')
    a('s_cmp_lt_u32 s3, 6\ns_cbranch_scc1 L_noclr')
    a('s_add_u32 s56, s55, %d' % XSTR)
    a('s_cmp_eq_u32 s3, 7\ns_cselect_b32 s56, s7, s56')
    a('s_add_u32 s56, s56, 4096')
    a('v_lshl_add_u32 v43, v1, 4, s56')
    for i in range(8):
        a('global_store_dwordx4 v43, v[44:47], %s offset:%d sc1' % (sX, i * 1024 - 4096))
    a('L_noclr:')
    a('s_cmp_ge_u32 s3, 4\ns_cbranch_scc1 L_nopar')
    a('s_lshl_b32 s56, s4, 9')
    a('v_lshl_add_u32 v43, v0, 1, s56')
    a('v_lshrrev_b32 v48, 7, v0\ns_lshl_b32 s56, s4, 2\nv_lshl_add_u32 v48, v48, 1, s56')
    for i in range(7): a('v_mov_b32 v%d, 0' % (G0 + i))
    for i, p in enumerate([pARE, pAIM, pBRE, pBIM, pCRE, pCIM]):
        a('global_load_short_d16_hi v%d, v43, %s' % (G0 + i, p))
    a('global_load_short_d16_hi v%d, v48, %s' % (G0 + 6, pLDT))
    a('L_nopar:')
    KR, VR, SK, X0, SS = 96, 112, 80, 116, 120
    a('buffer_load_dwordx4 %s, v41, s[8:11], 0 offen' % vr(KR, 4))
    for j in (1, 2, 3):
        a('v_add_u32 v%d, %d, v41' % (48 + j, -1024 * j))
        a('buffer_load_dwordx4 %s, v%d, s[8:11], 0 offen' % (vr(KR + 4 * j, 4), 48 + j))
    a('global_load_dwordx4 %s, v41, %s' % (vr(VR, 4), pV))
    for j in range(4):
        a('global_load_dwordx4 %s, v42, %s offset:%d' % (vr(SK + 4 * j, 4), pSK, 16 * j))
    a('global_load_dwordx4 %s, v41, %s' % (vr(X0, 4), pQ))
    a('s_lshl_b32 s56, s4, 13\nv_lshl_add_u32 v43, v0, 4, s56')
    a('s_mov_b32 s64, s24\ns_mov_b32 s65, s25\ns_mov_b32 s66, 0x200000\ns_mov_b32 s67, 0x20000')
    a('buffer_load_dwordx4 %s, v43, s[64:67], 0 offen' % vr(SS, 4))
    a('buffer_load_dwordx2 %s, v43, s[64:67], 0 offen offset:16' % vr(SS + 4, 2))
    NL = 12
    npre = 0
    if o['prefetch']:
        a('s_getpc_b64 s[56:57]')
        a('v_lshlrev_b32 v52, 5, v0\nv_mov_b32 v53, s57\nv_add_co_u32 v52, vcc, s56, v52\nv_addc_co_u32 v53, vcc, 0, v53, vcc')
        a('global_load_dword v126, v[52:53], off')
        npre = 1
    a('s_lshl_b32 s56, s4, 2')
    a('s_load_dword s57, %s, s56\ns_load_dword %s, %s, s56' % (pSSMD, sDB, pDSK))
    a('s_lshr_b32 s5, s2, 5\ns_and_b32 s56, s2, 31')
    a('s_and_b32 s58, s56, 7\ns_lshl_b32 s58, s58, 2\ns_lshr_b32 s56, s56, 3\ns_add_u32 s56, s56, s58')
    a('s_lshl_b32 s56, s56, 5\ns_lshl_b32 s5, s5, 10\ns_add_u32 s56, s56, s5\ns_add_u32 s56, s56, %d' % XSTR)
    a('v_lshrrev_b32 v40, 1, v0\nv_and_b32 v48, 1, v0')
    a('v_mul_u32_u24 v2, %d, v40' % RSTR)
    a('v_lshl_add_u32 v2, v48, 4, v2\nv_add_u32 v2, s56, v2')
    a('v_lshl_add_u32 v3, v0, 4, s7')
    a('v_lshlrev_b32 v4, 12, v48\nv_lshl_add_u32 v4, v40, 2, v4\nv_add_u32 v4, %d, v4' % RIN)
    a('v_lshlrev_b32 v5, 4, v0\nv_add_u32 v5, %d, v5' % RIN)
    a('s_mul_i32 s56, s3, %d\ns_add_u32 s56, s56, %d\nv_lshl_add_u32 v6, v1, 4, s56' % (ROSTR, ROUT))
    a('v_bfe_u32 v40, v0, 2, 2\nv_sub_u32 v40, 3, v40\nv_mul_u32_u24 v7, %d, v40' % ROSTR)
    a('v_and_b32 v40, 0x1f0, v0\nv_lshl_add_u32 v7, v40, 1, v7')
    a('v_and_b32 v40, 3, v0\nv_lshl_add_u32 v7, v40, 3, v7\nv_add_u32 v7, %d, v7' % ROUT)
    a('v_and_b32 v40, 15, v1\nv_lshrrev_b32 v48, 4, v1')
    a('s_cmp_ge_u32 s3, 4\ns_cbranch_scc1 L_hadr')
    a('s_lshr_b32 s56, s3, 1\ns_and_b32 s58, s3, 1')
    a('s_mul_i32 s59, s56, %d\ns_lshl_b32 s60, s58, 8\ns_sub_u32 s59, s59, s60\ns_add_u32 s59, s59, %d' % (GSTR, GBUF + 16 * 33 - 192))
    a('v_lshlrev_b32 v8, 1, v40\nv_sub_u32 v8, v8, v48\nv_lshl_add_u32 v8, v8, 4, s59')
    a('s_lshl_b32 s59, s3, 10\ns_add_u32 s59, s59, %d\nv_lshl_add_u32 v9, v1, 4, s59' % PBUF)
    a('s_mul_i32 s59, s56, %d\ns_add_u32 s59, s59, s60' % FCH)
    a('v_add_u32 v49, 1, v40\nv_and_b32 v50, 3, v49\nv_lshrrev_b32 v49, 2, v49\nv_lshl_add_u32 v49, v48, 1, v49')
    a('v_mul_u32_u24 v10, %d, v50\nv_lshl_add_u32 v10, v49, 3, v10\nv_add_u32 v10, s59, v10' % FSTR)
    a('s_lshl_b32 s59, s3, 2\ns_add_u32 s59, s59, %d\nv_mov_b32 v11, s59' % FLP)
    a('v_mov_b32 v12, %d' % FLG)
    a('v_mov_b32 v44, 0\nv_mov_b32 v45, 0\nv_mov_b32 v46, 0\nv_mov_b32 v47, 0')
    a('s_cmp_eq_u32 s3, 0\ns_cbranch_scc0 L_z1')
    a('v_lshrrev_b32 v49, 5, v1\nv_mul_u32_u24 v49, %d, v49\nv_and_b32 v50, 31, v1\nv_lshl_add_u32 v49, v50, 4, v49' % GSTR)
    a('ds_write_b128 v49, v[44:47] offset:%d' % GBUF)
    a('L_z1:')
    a('s_cmp_eq_u32 s3, 1\ns_cbranch_scc0 L_adr_done')
    a('v_lshrrev_b32 v49, 1, v1\nv_and_b32 v49, 7, v49\nv_mul_u32_u24 v49, %d, v49\nv_and_b32 v50, 1, v1\nv_lshl_add_u32 v49, v50, 4, v49' % FSTR)
    a('ds_write_b128 v49, v[44:47]')
    a('v_min_u32 v49, 9, v1\nv_lshlrev_b32 v49, 4, v49')
    a('ds_write_b128 v49, v[44:47] offset:%d' % FLG)
    a('s_branch L_adr_done')
    a('L_hadr:')
    a('s_sub_u32 s56, s3, 5')
    a('v_lshrrev_b32 v49, 1, v1\nv_and_b32 v50, 1, v1')
    a('s_lshl_b32 s59, s4, 5')
    a('v_mul_u32_u24 v8, %d, v49\nv_lshl_add_u32 v8, v50, 4, v8\nv_add_u32 v8, s59, v8' % RSTR)
    a('v_mul_u32_u24 v9, %d, v50\nv_lshl_add_u32 v9, v49, 4, v9\nv_add_u32 v9, %d, v9' % (GSTR, GBUF + 512))
    a('v_mov_b32 v15, %d' % FLG)
    a('v_lshrrev_b32 v51, 2, v49\nv_and_b32 v52, 3, v49\nv_lshl_add_u32 v51, v52, 3, v51')
    a('v_lshl_add_u32 v52, v51, 1, v50')
    a('v_and_b32 v53, 3, v52\nv_lshrrev_b32 v52, 2, v52\nv_lshl_add_u32 v52, v53, 4, v52')
    a('s_lshl_b32 s59, s56, 12\ns_add_u32 s59, s59, %d\nv_lshl_add_u32 v10, v52, 4, s59' % PBUF)
    a('s_lshl_b32 s58, s56, 9\ns_add_u32 s58, s58, %d' % (GBUF + 512))
    a('v_sub_u32 v53, 1, v50\nv_lshlrev_b32 v53, 3, v53\nv_lshl_add_u32 v11, v51, 4, v53\nv_add_u32 v11, s58, v11')
    a('s_lshl_b32 s59, s56, 10\ns_add_u32 s59, s59, s55\ns_add_u32 s59, s59, %d\nv_lshl_add_u32 v12, v1, 4, s59' % (XSTR + 3072))
    a('s_lshl_b32 s59, s56, 4\ns_add_u32 s59, s59, %d\nv_mov_b32 v14, s59' % FLP)
    a('s_cmp_eq_u32 s3, 7\ns_cbranch_scc0 L_adr_done')
    a('s_waitcnt vmcnt(%d)' % (NL + npre))
    a('v_mov_b32 v49, s2\nv_mov_b32 v50, 1\ns_mov_b64 exec, 1')
    a('global_store_byte v49, v50, %s sc1' % pDBG)
    a('s_mov_b64 exec, -1')
    a('L_adr_done:')
    a('s_cmp_ge_u32 s3, 4\ns_cbranch_scc1 L_noprep')
    a('s_waitcnt vmcnt(%d)' % (NL + npre))
    g = G0
    a('v_mul_f32 v%d, 0x3fb8aa3b, v%d' % (g + 6, g + 6))
    a('v_exp_f32 v%d, v%d' % (g + 6, g + 6))
    a('v_cvt_pk_bf16_f32 v%d, v%d, v%d' % (g + 6, g + 6, g + 6))
    a('v_lshlrev_b32 v%d, 16, v%d' % (g + 6, g + 6))
    a('v_mul_f32 v%d, v%d, v%d\nv_mul_f32 v%d, v%d, v%d' % (g, g, g + 6, g + 1, g + 1, g + 6))
    a('v_mul_f32 v%d, 0x3fb8aa3b, v%d\nv_mul_f32 v%d, 0x3e22f983, v%d' % (g, g, g + 1, g + 1))
    a('v_mul_f32 v%d, v%d, v%d\nv_mul_f32 v%d, v%d, v%d' % (g + 2, g + 2, g + 6, g + 3, g + 3, g + 6))
    a('v_mul_f32 v%d, v%d, v%d' % (g + 7, g + 4, g + 2))
    a('v_fma_f32 v%d, -v%d, v%d, v%d' % (g + 7, g + 5, g + 3, g + 7))
    a('v_mul_f32 v%d, v%d, v%d' % (g + 8, g + 4, g + 3))
    a('v_fma_f32 v%d, v%d, v%d, v%d' % (g + 8, g + 5, g + 2, g + 8))
    a('v_lshlrev_b32 v49, 2, v0')
    a('ds_write2st64_b32 v49, v%d, v%d offset0:%d offset1:%d' % (g, g + 1, PA // 256, PB // 256))
    a('ds_write2st64_b32 v49, v%d, v%d offset0:%d offset1:%d' % (g + 7, g + 8, PWR // 256, PWI // 256))
    a('L_noprep:')
    a('s_mov_b32 s56, 0x05040100\ns_mov_b32 s58, 0x07060302')
    a('s_waitcnt vmcnt(%d)' % (3 + npre))
    stamp()
    KS = 48
    for i in range(4):
        for hl, sel in ((0, 's56'), (1, 's58')):
            ch = 2 * i + hl
            a('v_perm_b32 v%d, v%d, v%d, %s' % (56 + 2 * hl, KR + 4 + i, KR + i, sel))
            a('v_perm_b32 v%d, v%d, v%d, %s' % (57 + 2 * hl, KR + 12 + i, KR + 8 + i, sel))
        for hl in (0, 1):
            ch = 2 * i + hl
            a('v_dot2_f32_bf16 v%d, v%d, v%d, 0' % (KS + ch, 56 + 2 * hl, SK + 2 * ch))
        for hl in (0, 1):
            ch = 2 * i + hl
            a('v_dot2_f32_bf16 v%d, v%d, v%d, v%d' % (KS + ch, 57 + 2 * hl, SK + 2 * ch + 1, KS + ch))
    unpack(KR, VR, 4)
    for i in range(0, 8, 2):
        a('v_pk_mul_f32 %s, %s, %s' % (vr(KS + i, 2), vr(KS + i, 2), vr(KR + i, 2)))
    send(KS)
    stamp()
    a('v_mov_b32 v44, -1\nv_mov_b32 v45, -1\nv_mov_b32 v46, -1\nv_mov_b32 v47, -1')
    a('v_lshl_add_u32 v48, v0, 4, s55\nv_add_u32 v48, %d, v48\nv_add_u32 v49, %d, v48\nv_add_u32 v50, %d, v3\nv_add_u32 v51, %d, v3' % (3 * XSTR, 2 * XSTR, 4 * XSTR, 2 * XSTR))
    a('s_waitcnt vmcnt(%d)' % (1 + npre))
    build_copies(SS, 96)
    for r in ('v51', 'v48', 'v50', 'v49'):
        a('global_store_dwordx4 %s, v[44:47], %s sc1' % (r, sX))
    unpack(X, X0, 4)
    ln(X, N, 52)
    a('s_lshl_b32 %s, s57, 16\ns_and_b32 %s, s57, 0xffff0000' % (sD0, sD1))
    a('s_waitcnt lgkmcnt(0)\ns_barrier')
    a('s_cmp_ge_u32 s3, 4\ns_cbranch_scc1 L_noFA')
    load_F()
    a('L_noFA:')
    a('s_lshr_b32 s56, s3, 2\ns_add_u32 s58, s3, s56\ns_and_b32 s58, s58, 3')
    a('v_and_b32 v40, 15, v1\nv_lshrrev_b32 v41, 4, v1')
    a('s_cmp_eq_u32 s58, 0\ns_cbranch_scc0 L_k1')
    a('v_lshrrev_b32 v42, 3, v40\nv_and_b32 v43, 7, v40\nv_lshl_add_u32 v42, v42, 7, v43\ns_branch L_kx')
    a('L_k1:\ns_cmp_eq_u32 s58, 1\ns_cbranch_scc0 L_k2')
    a('v_lshrrev_b32 v42, 2, v40\nv_and_b32 v43, 3, v40\nv_lshlrev_b32 v43, 1, v43\nv_lshl_add_u32 v42, v42, 7, v43\nv_add_u32 v42, 256, v42')
    a('v_lshrrev_b32 v43, 1, v40\nv_and_b32 v44, 1, v40\nv_lshlrev_b32 v44, 2, v44\nv_lshl_add_u32 v43, v43, 7, v44')
    a('v_cmp_gt_u32 vcc, 8, v40\nv_cndmask_b32 v42, v43, v42, vcc\ns_branch L_kx')
    a('L_k2:\ns_cmp_eq_u32 s58, 2\ns_cbranch_scc0 L_k3')
    a('v_lshlrev_b32 v42, 7, v40\nv_add_u32 v42, 1024, v42\ns_branch L_kx')
    a('L_k3:\nv_lshlrev_b32 v42, 3, v40')
    a('L_kx:')
    a('v_cvt_f32_u32 v44, v42')
    a('s_lshl_b32 s59, s56, 9\nv_lshl_add_u32 v43, v41, 4, s59')
    a('s_lshl_b32 s59, s56, 13\ns_add_u32 s59, s59, %d\nv_lshl_add_u32 v46, v1, 4, s59' % QF)
    A_, B_, C_, S_ = 48, 52, 56, 60
    def kvals(s, isq):
        a('ds_read_b128 %s, v43 offset:%d' % (vr(A_, 4), PA + 64 * s))
        a('ds_read_b128 %s, v43 offset:%d' % (vr(B_, 4), PB + 64 * s))
        if isq:
            a('ds_read_b128 %s, v43 offset:%d' % (vr(96, 4), PWR + 64 * s))
            a('ds_read_b128 %s, v43 offset:%d' % (vr(100, 4), PWI + 64 * s))
        a('s_waitcnt lgkmcnt(%d)' % (2 if isq else 0))
        for i in (0, 2):
            a('v_pk_mul_f32 %s, %s, v[44:45] op_sel_hi:[1,0]' % (vr(B_ + i, 2), vr(B_ + i, 2)))
            a('v_pk_mul_f32 %s, %s, v[44:45] op_sel_hi:[1,0]' % (vr(A_ + i, 2), vr(A_ + i, 2)))
        for i in range(4): a('v_fract_f32 v%d, v%d' % (B_ + i, B_ + i))
        for i in range(4): a('v_exp_f32 v%d, v%d' % (A_ + i, A_ + i))
        for i in range(4): a('v_cos_f32 v%d, v%d' % (C_ + i, B_ + i))
        for i in range(4): a('v_sin_f32 v%d, v%d' % (S_ + i, B_ + i))
        if not isq:
            for i in (0, 2):
                a('v_pk_mul_f32 %s, %s, %s' % (vr(C_ + i, 2), vr(C_ + i, 2), vr(A_ + i, 2)))
                a('v_pk_mul_f32 %s, %s, %s' % (vr(S_ + i, 2), vr(S_ + i, 2), vr(A_ + i, 2)))
            for i in range(4):
                a('v_cvt_pk_bf16_f32 v%d, v%d, v%d' % (64 + 4 * s + i, C_ + i, S_ + i))
        else:
            a('s_waitcnt lgkmcnt(0)')
            for i in (0, 2):
                a('v_pk_mul_f32 %s, %s, %s' % (vr(96 + i, 2), vr(96 + i, 2), vr(A_ + i, 2)))
                a('v_pk_mul_f32 %s, %s, %s' % (vr(100 + i, 2), vr(100 + i, 2), vr(A_ + i, 2)))
            for i in (0, 2):
                a('v_pk_mul_f32 %s, %s, %s' % (vr(A_ + i, 2), vr(96 + i, 2), vr(C_ + i, 2)))
                a('v_pk_mul_f32 %s, %s, %s' % (vr(B_ + i, 2), vr(96 + i, 2), vr(S_ + i, 2)))
            for i in (0, 2):
                a('v_pk_fma_f32 %s, %s, %s, %s neg_lo:[1,0,0] neg_hi:[1,0,0]' % (vr(A_ + i, 2), vr(100 + i, 2), vr(S_ + i, 2), vr(A_ + i, 2)))
                a('v_pk_fma_f32 %s, %s, %s, %s' % (vr(B_ + i, 2), vr(100 + i, 2), vr(C_ + i, 2), vr(B_ + i, 2)))
            for i in range(4):
                a('v_cvt_pk_bf16_f32 v%d, v%d, -v%d' % (104 + i, A_ + i, B_ + i))
            a('ds_write_b128 v46, %s offset:%d' % (vr(104, 4), 1024 * s))
    a('s_cmp_eq_u32 s58, 3\ns_cbranch_scc1 L_kq')
    for s in range(8): kvals(s, False)
    a('s_branch L_kdone')
    a('L_kq:')
    for s in range(8): kvals(s, True)
    a('L_kdone:')
    a('s_waitcnt lgkmcnt(0)\ns_barrier')
    stamp()
    a('s_cmp_eq_u32 s58, 3\ns_cbranch_scc1 L_kskip')
    for s in range(8): a('ds_read_b128 %s, v46 offset:%d' % (vr(96 + 4 * s, 4), 1024 * s))
    a('v_lshlrev_b32 v47, 4, v41')
    for r in range(4): a('ds_bpermute_b32 v%d, v47, v42 offset:%d' % (48 + r, 4 * r))
    a('s_mul_i32 s59, s56, %d\ns_add_u32 s59, s59, %d\nv_lshl_add_u32 v47, v40, 4, s59' % (TSTR, T16))
    a('s_waitcnt lgkmcnt(0)')
    for s in range(8):
        a('v_mfma_f32_16x16x32_bf16 v[52:55], %s, %s, %s' % (vr(64 + 4 * s, 4), vr(96 + 4 * s, 4), '0' if s == 0 else 'v[52:55]'))
    for r in range(4): a('v_lshl_add_u32 v%d, v%d, 1, v47' % (48 + r, 48 + r))
    a('v_cvt_pk_bf16_f32 v56, v52, v53\nv_cvt_pk_bf16_f32 v57, v54, v55')
    a('ds_write_b16 v48, v56\nds_write_b16_d16_hi v49, v56\nds_write_b16 v50, v57\nds_write_b16_d16_hi v51, v57')
    a('L_kskip:')
    a('v_and_b32 v40, 255, v0\nv_lshlrev_b32 v41, 3, v40\nv_cvt_f32_u32 v64, v41')
    import struct
    for e in range(1, 12): a('v_add_f32 v%d, 0x%08x, v64' % (64 + e, struct.unpack('<I', struct.pack('<f', e))[0]))
    for e in range(0, 12, 2): a('v_cvt_pk_bf16_f32 v%d, v%d, v%d' % (76 + e // 2, 64 + e, 65 + e))
    unpack(64, 76, 6)
    a('v_lshrrev_b32 v41, 8, v0\nv_mul_u32_u24 v42, %d, v41\nv_add_u32 v42, %d, v42' % (TSTR, T16))
    for e in range(12): a('v_cvt_u32_f32 v%d, v%d' % (64 + e, 64 + e))
    for e in range(12): a('v_lshl_add_u32 v%d, v%d, 1, v42' % (64 + e, 64 + e))
    a('s_waitcnt lgkmcnt(0)\ns_barrier')
    for e in range(12): a('ds_read_u16 v%d, v%d' % (76 + e, 64 + e))
    a('s_waitcnt lgkmcnt(0)')
    for e in range(6): a('v_lshl_or_b32 v%d, v%d, 16, v%d' % (64 + e, 77 + 2 * e, 76 + 2 * e))
    build_copies(64, 96)
    a('s_waitcnt vmcnt(0) lgkmcnt(0)\ns_barrier')
    stamp()
    W = o['win']
    def pissue(b): a('global_load_dwordx4 %s, v%d, %s sc1' % (vr(64 + 4 * b, 4), 96 + b, sX))
    a('s_cmp_eq_u32 s3, 4\ns_cbranch_scc0 L_loop')
    for b in range(8): a('v_add_u32 v%d, %d, v8' % (96 + b, b * 32 * RSTR))
    a('v_lshlrev_b32 v40, 2, v1')
    a('L_w0:\nglobal_load_dword v41, v40, %s sc1\ns_waitcnt vmcnt(0)' % pDBG)
    a('v_cmp_ne_u32 vcc, 0x01010101, v41\ns_cbranch_vccz L_w1')
    spin_guard('L_w0')
    a('L_w1:')
    for b in range(W): pissue(b)
    a('L_loop:')
    a('v_mov_b32 v40, %s' % sEp)
    a('s_cmp_ge_u32 s3, 4\ns_cbranch_scc1 L_helper')
    Gs = (G0, G1)
    def gread(b):
        for rho in range(4):
            a('ds_read_b128 %s, v8 offset:%d' % (vr(Gs[b & 1] + 4 * rho, 4), 512 * b + 64 * (3 - rho)))
    def spinG(b):
        top, done = L('Lg'), L('Lgd')
        a('%s:\nds_read_b32 v41, v12 offset:%d\ns_waitcnt lgkmcnt(0)' % (top, 4 * b))
        a('v_cmp_eq_u32 vcc, v40, v41\ns_cbranch_vccnz %s' % done)
        spin_guard(top)
        a('%s:' % done)
    def mm(b, c, rho):
        a('v_mfma_f32_16x16x32_bf16 %s, %s, %s, %s' % (vr(ACC + 4 * c, 4), vr(F + (rho * 8 + c - b) * 4, 4), vr(Gs[b & 1] + 4 * rho, 4),
            '0' if (b == 0 and rho == 0) else vr(ACC + 4 * c, 4)))
    spinG(0)
    gread(0)
    for b in range(8):
        if b < 7: a('ds_read_b32 v42, v12 offset:%d' % (4 * (b + 1)))
        a('s_waitcnt lgkmcnt(%d)' % (1 if b < 7 else 0))
        for rho in range(4): mm(b, b, rho)
        off = [(c, rho) for rho in range(4) for c in range(b + 1, 8)]
        k = 0
        if b < 7:
            skip, late = L('Ls'), L('Ll')
            a('s_waitcnt lgkmcnt(0)')
            a('v_cmp_eq_u32 s[56:57], v40, v42')
            while k < min(2, len(off)): mm(b, *off[k]); k += 1
            a('s_cmp_eq_u64 s[56:57], 0\ns_cbranch_scc1 %s' % skip)
            gread(b + 1)
            a('%s:' % skip)
            while k < min(4, len(off)): mm(b, *off[k]); k += 1
        a('ds_write_b128 v9, %s offset:%d' % (vr(ACC + 4 * b, 4), 4096 * b))
        a('s_mov_b64 exec, 1\nds_write_b32 v11, v40 offset:%d\ns_mov_b64 exec, -1' % (16 * b))
        while k < len(off): mm(b, *off[k]); k += 1
        if b < 7:
            a('s_cmp_eq_u64 s[56:57], 0\ns_cbranch_scc0 %s' % late)
            spinG(b + 1)
            gread(b + 1)
            a('%s:' % late)
    stamp()
    a('s_cmp_eq_u32 %s, 1\ns_cbranch_scc0 L_row' % sEp)
    load_F()
    a('s_branch L_row')
    a('L_helper:')
    a('s_cmp_eq_u32 s3, 4\ns_cbranch_scc0 L_fin')
    for b in range(8):
        n = min(W, 8 - b)
        a('L_pc%d:\ns_waitcnt vmcnt(%d)' % (b, n - 1))
        d = 64 + 4 * b
        a('v_max3_u32 v60, v%d, v%d, v%d\nv_max_u32 v60, v60, v%d' % (d, d + 1, d + 2, d + 3))
        a('v_cmp_eq_u32 vcc, -1, v60\ns_cbranch_vccnz L_pr%d' % b)
        a('ds_write_b128 v9, %s offset:%d' % (vr(d, 4), 512 * b))
        a('s_mov_b64 exec, 1\nds_write_b32 v15, v40 offset:%d\ns_mov_b64 exec, -1' % (4 * b))
        if b + W < 8: pissue(b + W)
    stamp()
    a('s_branch L_row')
    for b in range(8):
        a('L_pr%d:' % b)
        for k in range(min(W, 8 - b)): pissue(b + k)
        spin_guard('L_pc%d' % b)
    a('L_fin:')
    for it in range(3):
        if it == 2: a('s_cmp_eq_u32 s3, 7\ns_cbranch_scc1 L_findone')
        top, done = L('Lf'), L('Lfd')
        a('%s:\nds_read_b128 v[44:47], v14 offset:%d\ns_waitcnt lgkmcnt(0)' % (top, 48 * it))
        a('v_min_u32 v44, v44, v45\nv_min3_u32 v44, v44, v46, v47')
        a('v_cmp_eq_u32 vcc, v40, v44\ns_cbranch_vccnz %s' % done)
        spin_guard(top)
        a('%s:' % done)
        for w_ in range(4): a('ds_read_b128 %s, v10 offset:%d' % (vr(64 + 4 * w_, 4), 12288 * it + 1024 * w_))
        for ch in range(2): a('ds_read_b64 %s, v11 offset:%d' % (vr(80 + 2 * ch, 2), 1536 * it + GSTR * ch))
        a('s_waitcnt lgkmcnt(2)')
        for ch in range(2):
            for i in (0, 2):
                a('v_pk_add_f32 %s, %s, %s' % (vr(64 + 8 * ch + i, 2), vr(64 + 8 * ch + i, 2), vr(68 + 8 * ch + i, 2)))
        a('s_waitcnt lgkmcnt(0)')
        for ch in range(2):
            u = 84 + 4 * ch
            a('v_and_b32 v%d, 0xffff0000, v%d\nv_lshlrev_b32 v%d, 16, v%d' % (u, 81 + 2 * ch, u + 1, 81 + 2 * ch))
            a('v_and_b32 v%d, 0xffff0000, v%d\nv_lshlrev_b32 v%d, 16, v%d' % (u + 2, 80 + 2 * ch, u + 3, 80 + 2 * ch))
        for ch in range(2):
            for r in range(4):
                a('v_fmac_f32 v%d, %s, v%d' % (64 + 8 * ch + r, (sD0, sD1)[ch], 84 + 4 * ch + r))
        for r in range(4): a('v_cvt_pk_bf16_f32 v%d, v%d, v%d' % (44 + r, 64 + r, 72 + r))
        for r in range(4): a('v_min_u32 v%d, -2, v%d' % (44 + r, 44 + r))
        a('global_store_dwordx4 v12, v[44:47], %s offset:%d sc1' % (sX, -3072 + 3072 * it))
    a('L_findone:')
    if stamps: a('s_memrealtime s[60:61]\ns_waitcnt lgkmcnt(0)\ns_mov_b32 s76, s60')
    a('L_row:')
    poll(44, vRowIn)
    a('ds_write2st64_b32 %s, v44, v45 offset0:0 offset1:4' % vRinW)
    a('ds_write2st64_b32 %s, v46, v47 offset0:8 offset1:12' % vRinW)
    a('s_waitcnt lgkmcnt(0)\ns_barrier')
    stamp()
    a('ds_read_b128 v[44:47], %s' % vRowRd)
    a('s_add_u32 s52, s52, %d\ns_addc_u32 s53, s53, 0' % (2 * XSTR))
    a('s_cmp_eq_u32 s3, 4\ns_cbranch_scc0 L_noearly')
    a('s_cmp_eq_u32 %s, 3\ns_cbranch_scc1 L_noearly' % sEp)
    for b in range(W): pissue(b)
    a('L_noearly:')
    a('s_cmp_eq_u32 %s, 1\ns_cbranch_scc0 L_r23' % sEp)
    a('s_waitcnt lgkmcnt(0)')
    unpack(Y, 44, 4)
    a('s_lshl_b32 %s, %s, 16\ns_and_b32 %s, %s, 0xffff0000' % (sD0, sDB, sD1, sDB))
    a('s_branch L_gate')
    a('L_r23:\ns_waitcnt lgkmcnt(0)')
    unpack(48, 44, 4)
    for i in range(0, 8, 2): a('v_pk_add_f32 %s, %s, %s' % (vr(X + i, 2), vr(X + i, 2), vr(48 + i, 2)))
    a('s_cmp_eq_u32 %s, 3\ns_cbranch_scc1 L_out' % sEp)
    ln(X, N, 52)
    a('L_gate:')
    for i in range(0, 8, 2): a('v_pk_fma_f32 %s, %s, %s, %s' % (vr(X + i, 2), vr(N + i, 2), vr(Y + i, 2), vr(X + i, 2)))
    ln(X, N, 52)
    send(N)
    stamp()
    a('s_add_u32 %s, %s, 1' % (sEp, sEp))
    if stamps:
        a('s_cmp_eq_u32 %s, 2\ns_cbranch_scc0 L_st3' % sEp)
        for i in range(4): a('s_mov_b32 s%d, s%d' % (80 + i, 75 + i))
        a('s_branch L_loop\nL_st3:')
        for i in range(4): a('s_mov_b32 s%d, s%d' % (84 + i, 75 + i))
    a('s_branch L_loop')
    a('L_out:')
    for i in range(4): a('v_cvt_pk_bf16_f32 v%d, v%d, v%d' % (44 + i, X + 2 * i, X + 2 * i + 1))
    a('v_lshl_add_u32 v41, v1, 4, s6')
    a('global_store_dwordx4 v41, v[44:47], %s' % pOUT)
    if stamps:
        a('s_waitcnt vmcnt(0)')
        a('s_memrealtime s[60:61]\ns_waitcnt lgkmcnt(0)\ns_mov_b32 s79, s60')
        a('s_lshl_b32 s56, s2, 3\ns_add_u32 s56, s56, s3\ns_lshl_b32 s56, s56, 7\ns_add_u32 s56, s56, 0x2000000')
        a('v_mov_b32 v41, s56\ns_mov_b64 exec, 1')
        for i in range(18):
            a('v_mov_b32 v42, s%d\nglobal_store_dword v41, v42, %s offset:%d' % (70 + i, pWS, 4 * i))
    a('L_exit:')
    body = a.finish()
    hdr = open('cdna_kernels/%s.s.ref' % NAME).read().split('; Override launch')[0]
    txt = hdr + '; @launch grid=(256,1,1) block=(512,1,1) lds=%d\n' % LDS
    txt += '.amdgcn_target "amdgcn-amd-amdhsa--gfx950"\n.text\n.globl %s_kernel\n.p2align 8\n.type %s_kernel,@function\n%s_kernel:\n' % (NAME, NAME, NAME)
    txt += body + '    s_endpgm\n'
    txt += '.fill 4096, 4, 0xbf800000\n' if o['prefetch'] else ''
    txt += '''.section .rodata,"a"
.p2align 6
.amdhsa_kernel %s_kernel
  .amdhsa_next_free_vgpr 256
  .amdhsa_next_free_sgpr 102
  .amdhsa_accum_offset 256
  .amdhsa_group_segment_fixed_size 0
  .amdhsa_kernarg_size 144
  .amdhsa_user_sgpr_count 2
  .amdhsa_user_sgpr_kernarg_segment_ptr 1
  .amdhsa_system_sgpr_workgroup_id_x 1
.end_amdhsa_kernel
''' % NAME
    return txt
if __name__ == '__main__':
    out = sys.argv[1] if len(sys.argv) > 1 else 'cdna_kernels/%s.s' % NAME
    open(out, 'w').write(generate(stamps=(len(sys.argv) > 2)))
```

```python
import sys, struct
from asmgen import Asm
NAME = 'interleave_layers__ssm_conv_h3__ssm_conv_s4__prompt'
def fbits(x): return struct.unpack('<I', struct.pack('<f', x))[0]
DEFAULTS = dict(prefetch=2, lead=5, prio=0, hprio=3, ssm=1, wa=0, wb=1, da=24, dr=20, dg0=50, dg1=8, dg='2,2,6', pw=4, sl=1, rs=0, wso=0)
def generate(stamps=False, opts=None):
    o = dict(DEFAULTS)
    if opts: o.update(opts)
    a = Asm()
    TAGO = 8192
    RSTR = 8192 + 2048 + 128
    CSTR = 16384 + 128
    XCR = 256 * RSTR
    PSTR = XCR + 256 * CSTR
    GENO = 0x3000000
    FSTR = 4160
    FCH = 4 * FSTR
    PBUF = 0
    FB = 65536
    FA = FB + 2 * FCH
    MROW, MCH = 528, 57 * 528
    GBUF, GSTR = FA + 2 * FCH, 4608
    FLG = GBUF + 2 * GSTR
    CNT, CNTM, CNTA, FLS, PRE, CNT1 = FLG + 64, FLG + 68, FLG + 72, FLG + 128, FLG + 76, FLG + 80
    FLP = FLG + 256
    RIN, RISTR = FLG + 512, 1040
    T16, TSTR = RIN, 4896
    ROUT, ROSTR = RIN + 2 * TSTR, 1088
    LDS = ROUT + 8 * ROSTR
    assert LDS <= 163840
    SPIN = 400000
    sSpin, sEp, sT, sSync = 's12', 's13', 's54', 's55'
    P = lambda i: 's[%d:%d]' % (16 + 2 * i, 17 + 2 * i)
    pQ, pK, pV, pSK, pSSMK, pSSMD, pU, pARE, pAIM, pBRE, pBIM, pCRE, pCIM, pLDT, pDSK, pOUT, pDBG, pWS = [P(i) for i in range(18)]
    sX = 's[52:53]'
    sDA, sDB = 's14', 's15'
    vr = lambda i, n: 'v[%d:%d]' % (i, i + n - 1)
    snames = {}
    def stamp(name):
        if not stamps: return
        if name not in snames: snames[name] = 70 + len(snames)
        a('s_memrealtime s[60:61]\ns_waitcnt lgkmcnt(0)\ns_mov_b32 s%d, s60' % snames[name])
    def estamp(name):
        if not stamps: return
        for e in (1, 2, 3):
            n = '%s%d' % (name, e)
            if n not in snames: snames[n] = 70 + len(snames)
        a('s_memrealtime s[60:61]\ns_waitcnt lgkmcnt(0)')
        for e in (1, 2, 3):
            a('s_cmp_eq_u32 %s, %d\ns_cselect_b32 s%d, s60, s%d' % (sEp, e, snames['%s%d' % (name, e)], snames['%s%d' % (name, e)]))
    lab = [0]
    def L(p='L'):
        lab[0] += 1; return '%s_%d' % (p, lab[0])
    def spin_guard(top):
        a('s_sub_u32 %s, %s, 1\ns_cbranch_scc1 L_exit\ns_branch %s' % (sSpin, sSpin, top))
    def sleep(n):
        while n > 0:
            a('s_sleep %d' % min(n, 127)); n -= 127
    def tagof(dst, d):
        a('v_add3_u32 v%d, v%d, v%d, v%d\nv_add3_u32 v%d, v%d, v%d, %s' % (dst, d, d + 1, d + 2, dst, dst, d + 3, sT))
    def unpack(dst, src, n):
        for i in range(n):
            a('v_lshlrev_b32 v%d, 16, v%d' % (dst + 2 * i, src + i))
            a('v_and_b32 v%d, 0xffff0000, v%d' % (dst + 2 * i + 1, src + i))
    def lds_wait_eq(addr, off, val, tmp):
        top, done = L('Lw'), L('Lwd')
        a('%s:\nds_read_b32 v%d, %s offset:%d\ns_waitcnt lgkmcnt(0)\nv_cmp_eq_u32 vcc, %s, v%d\ns_cbranch_vccnz %s\ns_sleep 2' % (top, tmp, addr, off, val, tmp, done))
        spin_guard(top)
        a('%s:' % done)
    def cnt_add(off, one, adr):
        a('s_mov_b64 exec, 1\nds_add_u32 %s, %s offset:%d\ns_mov_b64 exec, -1' % (adr, one, off - FLG))
    def cnt_wait(off, val, tmp, adr, slp=0):
        top, done = L('Ls'), L('Lsd')
        a('%s:\nds_read_b32 v%d, %s offset:%d\ns_waitcnt lgkmcnt(0)\nv_cmp_le_u32 vcc, %s, v%d\ns_cbranch_vccnz %s' % (top, tmp, adr, off - FLG, val, tmp, done))
        if slp: a('s_sleep %d' % slp)
        spin_guard(top)
        a('%s:' % done)
    def ln2(rows, t):
        R = [(s, d, t + 8 * i) for i, (s, d) in enumerate(rows)]
        def each(f):
            for s, d, u in R: a(f(s, d, u))
        each(lambda s, d, u: 'v_pk_add_f32 %s, %s, %s' % (vr(u, 2), vr(s, 2), vr(s + 2, 2)))
        each(lambda s, d, u: 'v_pk_mul_f32 %s, %s, %s' % (vr(u + 4, 2), vr(s, 2), vr(s, 2)))
        each(lambda s, d, u: 'v_pk_add_f32 %s, %s, %s' % (vr(u + 2, 2), vr(s + 4, 2), vr(s + 6, 2)))
        each(lambda s, d, u: 'v_pk_fma_f32 %s, %s, %s, %s' % (vr(u + 4, 2), vr(s + 2, 2), vr(s + 2, 2), vr(u + 4, 2)))
        each(lambda s, d, u: 'v_pk_add_f32 %s, %s, %s' % (vr(u, 2), vr(u, 2), vr(u + 2, 2)))
        each(lambda s, d, u: 'v_pk_fma_f32 %s, %s, %s, %s' % (vr(u + 4, 2), vr(s + 4, 2), vr(s + 4, 2), vr(u + 4, 2)))
        each(lambda s, d, u: 'v_add_f32 v%d, v%d, v%d' % (u, u, u + 1))
        each(lambda s, d, u: 'v_pk_fma_f32 %s, %s, %s, %s' % (vr(u + 4, 2), vr(s + 6, 2), vr(s + 6, 2), vr(u + 4, 2)))
        each(lambda s, d, u: 'v_add_f32 v%d, v%d, v%d' % (u + 4, u + 4, u + 5))
        (sa, da_, ua), (sb, db, ub) = R
        a('v_permlane32_swap_b32 v%d, v%d' % (ua, ua + 4))
        a('v_permlane32_swap_b32 v%d, v%d' % (ub, ub + 4))
        a('v_add_f32 v%d, v%d, v%d' % (ua, ua, ua + 4))
        a('v_add_f32 v%d, v%d, v%d' % (ub, ub, ub + 4))
        a('v_permlane16_swap_b32 v%d, v%d' % (ua, ub))
        a('v_add_f32 v%d, v%d, v%d' % (ua, ua, ub))
        for r in (8, 4, 2, 1):
            a('v_add_f32_dpp v%d, v%d, v%d row_ror:%d row_mask:0xf bank_mask:0xf' % (ua, ua, ua, r))
        a('v_mul_f32 v%d, 0x3b000000, v%d' % (ua, ua))
        a('v_mov_b32 v%d, v%d' % (ub, ua))
        a('v_permlane32_swap_b32 v%d, v%d' % (ua, ub))
        a('v_fma_f32 v%d, -v%d, v%d, v%d' % (ub, ua, ua, ub))
        a('v_max_f32 v%d, 0, v%d' % (ub, ub))
        a('v_add_f32 v%d, 0x3727c5ac, v%d' % (ub, ub))
        a('v_rsq_f32 v%d, v%d' % (ub, ub))
        a('v_mul_f32_e64 v%d, v%d, -v%d' % (ua, ua, ub))
        a('v_readlane_b32 s56, v%d, 0\nv_readlane_b32 s58, v%d, 16\nv_readlane_b32 s62, v%d, 0\nv_readlane_b32 s63, v%d, 16' % (ub, ub, ua, ua))
        a('v_mov_b32 v%d, s62\nv_mov_b32 v%d, s63' % (ua, ub))
        for (s, d, u), sr in zip(R, ('s[56:57]', 's[58:59]')):
            for i in range(0, 8, 2):
                a('v_pk_fma_f32 %s, %s, %s, %s op_sel_hi:[1,0,0]' % (vr(d + i, 2), vr(s + i, 2), sr, vr(u, 2)))
    def build_copies(d, t, A, head):
        sk = L('Lbz')
        a('s_cbranch_scc0 %s' % sk)
        a('v_lshrrev_b32 v%d, 1, v1\nv_mul_u32_u24 v%d, %d, v%d\nv_and_b32 v%d, 1, v1\nv_lshl_add_u32 v%d, v%d, 4, v%d' % (t, t, FSTR, t, t + 1, t, t + 1, t))
        a('v_lshlrev_b32 v%d, 4, v1\nv_sub_u32 v%d, v%d, v%d\nv_add_u32 v%d, v%d, v%d' % (t + 1, t + 1, A, t + 1, t, t, t + 1))
        for i in range(4): a('v_mov_b32 v%d, 0' % (t + 4 + i))
        a('v_alignbit_b32 v%d, v%d, v%d, 16\nv_lshlrev_b32 v%d, 16, v%d' % (t + 1, d + 1, d, t + 2, d))
        a('s_mov_b64 exec, 0xff')
        a('ds_write_b128 v%d, %s offset:%d' % (t, vr(t + 4, 4), head))
        a('s_mov_b64 exec, 1')
        a('ds_write_b32 v%d, v%d offset:%d' % (A, t + 2, head + FSTR + 28))
        a('ds_write_b32 v%d, v%d offset:%d' % (A, d, head + 2 * FSTR + 28))
        a('ds_write_b32 v%d, v%d offset:%d' % (A, t + 2, head + 3 * FSTR + 24))
        a('ds_write_b32 v%d, v%d offset:%d' % (A, t + 1, head + 3 * FSTR + 28))
        a('s_mov_b64 exec, -1')
        a('%s:' % sk)
        a('ds_write_b128 v%d, %s offset:%d' % (A, vr(d, 4), head + 32))
        for i in range(4): a('v_alignbit_b32 v%d, v%d, v%d, 16' % (t + i, d + i + 1, d + i))
        a('ds_write_b128 v%d, %s offset:%d' % (A, vr(t, 4), head + FSTR + 32))
        for i in range(4): a('v_mov_b32 v%d, v%d' % (t + 4 + i, d + i + 1))
        a('ds_write_b128 v%d, %s offset:%d' % (A, vr(t + 4, 4), head + 2 * FSTR + 32))
        for i in range(3): a('v_mov_b32 v%d, v%d' % (t + 8 + i, t + 1 + i))
        a('v_alignbit_b32 v%d, v%d, v%d, 16' % (t + 11, d + 5, d + 4))
        a('ds_write_b128 v%d, %s offset:%d' % (A, vr(t + 8, 4), head + 3 * FSTR + 32))
    def tr_addr(dst, chreg, tmp):
        a('v_bfe_u32 v%d, v1, 2, 2\nv_sub_u32 v%d, 3, v%d\nv_mul_u32_u24 v%d, %d, v%d' % (tmp, tmp, tmp, dst, ROSTR, tmp))
        a('v_and_b32 v%d, 0x1f0, v%d\nv_lshl_add_u32 v%d, v%d, 1, v%d' % (tmp, chreg, dst, tmp, dst))
        a('v_and_b32 v%d, 3, v1\nv_lshl_add_u32 v%d, v%d, 3, v%d\nv_add_u32 v%d, %d, v%d' % (tmp, dst, tmp, dst, dst, ROUT, dst))

    a('s_cmp_ge_u32 s2, 256\ns_cbranch_scc1 L_exit')
    a('s_load_dwordx16 s[16:31], s[0:1], 0\ns_load_dwordx16 s[32:47], s[0:1], 64\ns_load_dwordx4 s[48:51], s[0:1], 128')
    a('v_lshrrev_b32 v16, 6, v0\nv_and_b32 v1, 63, v0')
    a('s_and_b32 s4, s2, 7\ns_lshl_b32 s4, s4, 5\ns_lshr_b32 s5, s2, 3\ns_add_u32 s4, s4, s5')
    a('v_readfirstlane_b32 s3, v16')
    a('s_mov_b32 %s, %d\ns_mov_b32 %s, 1\ns_mov_b32 %s, 0' % (sSpin, SPIN, sEp, sSync))
    a('s_mul_i32 s7, s2, %d\ns_lshr_b32 s5, s2, 5' % RSTR)
    a('s_mov_b32 s10, 0x200000\ns_mov_b32 s11, 0x20000\ns_mov_b32 s66, 0x200000\ns_mov_b32 s67, 0x20000')
    for r in range(2, 16): a('v_mov_b32 v%d, 0' % r)
    a('s_lshl_b32 s57, s4, 2\ns_mov_b32 s58, %d' % GENO)
    a('s_cmp_ge_u32 s3, 8\ns_cbranch_scc1 L_aux')
    G0, G1, ACC, F = 16, 24, 32, 64
    KR, VR, SK, SS = 64, 80, 84, 100
    a('v_mov_b32 v28, 0\nv_mov_b32 v29, 0\nv_mov_b32 v30, 0\nv_mov_b32 v31, 0')
    a('s_cmp_eq_u32 s3, 0\ns_cbranch_scc0 L_z1')
    a('v_lshrrev_b32 v26, 5, v1\nv_mul_u32_u24 v26, %d, v26\nv_and_b32 v27, 31, v1\nv_lshl_add_u32 v26, v27, 4, v26\nv_add_u32 v26, %d, v26' % (GSTR, GBUF))
    a('ds_write_b128 v26, v[28:31]')
    a('L_z1:')
    a('s_cmp_eq_u32 s3, 1\ns_cbranch_scc0 L_z2')
    a('v_and_b32 v26, 31, v1\nv_lshlrev_b32 v26, 4, v26\nv_add_u32 v26, %d, v26' % FLG)
    a('ds_write_b128 v26, v[28:31]')
    a('L_z2:')
    a('s_lshl_b32 s6, s2, 3\ns_add_u32 s6, s6, s3\ns_lshl_b32 s6, s6, 10')
    a('v_lshl_add_u32 v17, v1, 4, s6\nv_lshlrev_b32 v18, 6, v1')
    for j in (1, 2, 3): a('v_add_u32 v%d, %d, v17' % (18 + j, -1024 * j))
    a('s_waitcnt lgkmcnt(0)')
    stamp('entry')
    a('s_mov_b32 s8, s18\ns_mov_b32 s9, s19')
    a('buffer_load_dwordx4 %s, v17, s[8:11], 0 offen' % vr(KR, 4))
    a('global_load_dwordx4 %s, v17, %s' % (vr(VR, 4), pV))
    for j in (1, 2, 3):
        a('buffer_load_dwordx4 %s, v%d, s[8:11], 0 offen' % (vr(KR + 4 * j, 4), 18 + j))
    for j in range(4):
        a('global_load_dwordx4 %s, v18, %s offset:%d' % (vr(SK + 4 * j, 4), pSK, 16 * j))
    a('s_barrier')
    a('s_add_u32 s52, s50, %d\ns_addc_u32 s53, s51, 0\ns_mov_b32 s64, s24\ns_mov_b32 s65, s25' % o['wso'])
    a('s_load_dword %s, %s, s57\ns_load_dword %s, %s, s58' % (sDA, pSSMD, sT, pWS))
    def ssm_load():
        a('s_lshl_b32 s59, s4, 13\nv_lshl_add_u32 v22, v0, 4, s59')
        a('buffer_load_dwordx4 %s, v22, s[64:67], 0 offen' % vr(SS, 4))
        a('buffer_load_dwordx2 %s, v22, s[64:67], 0 offen offset:16' % vr(SS + 4, 2))
    nafter = 0
    if o['ssm'] == 0:
        ssm_load(); nafter += 2
    a('v_lshl_add_u32 v3, v0, 4, s7')
    a('s_add_u32 s56, s7, %d\nv_lshl_add_u32 v4, v0, 2, s56' % TAGO)
    a('s_mul_i32 s56, s3, %d\ns_add_u32 s56, s56, %d\nv_lshl_add_u32 v6, v1, 4, s56' % (ROSTR, ROUT))
    tr_addr(7, 0, 24)
    a('v_and_b32 v24, 15, v1\nv_lshrrev_b32 v25, 4, v1')
    a('s_lshr_b32 s56, s3, 2\ns_and_b32 s58, s3, 3\ns_lshl_b32 s62, s58, 7')
    a('s_mul_i32 s59, s56, %d\ns_sub_u32 s59, s59, s62\ns_add_u32 s59, s59, %d' % (GSTR, GBUF + 16 * 33 - 64))
    a('v_lshlrev_b32 v8, 1, v24\nv_sub_u32 v8, v8, v25\nv_lshl_add_u32 v8, v8, 4, s59')
    a('v_add_u32 v26, v24, v25\nv_and_b32 v26, 15, v26\nv_lshl_add_u32 v26, v25, 4, v26')
    a('s_lshl_b32 s59, s3, 10\ns_add_u32 s59, s59, %d\nv_lshl_add_u32 v9, v26, 4, s59' % PBUF)
    a('s_mul_i32 s59, s56, %d\ns_add_u32 s63, s59, %d\ns_add_u32 s59, s63, s62' % (FCH, FA))
    a('v_add_u32 v26, 1, v24\nv_and_b32 v27, 3, v26\nv_lshrrev_b32 v26, 2, v26\nv_lshl_add_u32 v26, v25, 1, v26')
    a('v_mul_u32_u24 v10, %d, v27\nv_lshl_add_u32 v10, v26, 3, v10\nv_add_u32 v10, s59, v10' % FSTR)
    a('v_and_b32 v26, 255, v0\nv_lshl_add_u32 v13, v26, 4, s63')
    a('s_lshl_b32 s59, s3, 2\ns_add_u32 s59, s59, %d\nv_mov_b32 v11, s59\nv_mov_b32 v12, %d' % (FLP, FLG))
    a('v_mov_b32 v14, 1\ns_waitcnt lgkmcnt(0)')
    if o['wa']:
        a('v_mov_b32 v26, %s' % sT)
        a('global_store_dwordx4 v3, v[28:31], %s sc1\nglobal_store_dword v4, v26, %s sc1' % (sX, sX))
        nafter += 2
    a('s_add_u32 %s, %s, 1' % (sT, sT))
    a('s_mov_b32 s56, 0x05040100\ns_mov_b32 s58, 0x07060302')
    a('s_waitcnt vmcnt(%d)' % nafter)
    stamp('kv_in')
    if o['ssm'] == 1: ssm_load()
    KS = 32
    for i in range(4):
        for hl, sel in ((0, 's56'), (1, 's58')):
            a('v_perm_b32 v%d, v%d, v%d, %s' % (40 + 2 * hl, KR + 4 + i, KR + i, sel))
            a('v_perm_b32 v%d, v%d, v%d, %s' % (41 + 2 * hl, KR + 12 + i, KR + 8 + i, sel))
        for hl in (0, 1):
            ch = 2 * i + hl
            a('v_dot2_f32_bf16 v%d, v%d, v%d, 0' % (KS + ch, 40 + 2 * hl, SK + 2 * ch))
        for hl in (0, 1):
            ch = 2 * i + hl
            a('v_dot2_f32_bf16 v%d, v%d, v%d, v%d' % (KS + ch, 41 + 2 * hl, SK + 2 * ch + 1, KS + ch))
    unpack(KR, VR, 4)
    for i in range(0, 8, 2):
        a('v_pk_mul_f32 %s, %s, %s' % (vr(KS + i, 2), vr(KS + i, 2), vr(KR + i, 2)))
    for i in range(4):
        a('v_cvt_pk_bf16_f32 v%d, v%d, v%d' % (44 + i, KS + 2 * i, KS + 2 * i + 1))
    a('ds_write_b128 v6, v[44:47]')
    cnt_add(CNTM, 'v14', 'v12')
    cnt_wait(CNTM, '8', 5, 'v12')
    a('ds_read_b64_tr_b16 v[48:49], v7 offset:%d\nds_read_b64_tr_b16 v[50:51], v7' % (4 * ROSTR))
    a('s_waitcnt lgkmcnt(0)')
    a('global_store_dwordx4 v3, v[48:51], %s sc1' % sX)
    tagof(52, 48)
    a('global_store_dword v4, v52, %s sc1' % sX)
    stamp('XA_sent')
    a('s_waitcnt vmcnt(2)')
    stamp('ssm_in')
    a('s_lshl_b32 s62, %s, 16\ns_and_b32 s63, %s, 0xffff0000\ns_cmp_lt_u32 s3, 4\ns_cselect_b32 s62, s62, s63' % (sDA, sDA))
    a('v_lshlrev_b32 v32, 16, v%d\nv_add_f32 v32, s62, v32\nv_cvt_pk_bf16_f32 v32, v32, v32\nv_mov_b32 v33, 0xffff' % SS)
    a('v_bfi_b32 v32, v33, v32, v%d\nv_and_b32 v33, 255, v0\nv_cmp_eq_u32 vcc, 0, v33\nv_cndmask_b32 v%d, v%d, v32, vcc' % (SS, SS, SS))
    a('s_and_b32 s56, s3, 3\ns_cmp_eq_u32 s56, 0')
    build_copies(SS, 32, 13, 0)
    cnt_add(CNTM, 'v14', 'v12')
    cnt_wait(CNTM, '16', 5, 'v12')
    stamp('bar2')
    def load_F():
        for m in range(8):
            for rho in range(2):
                for q in range(2):
                    a('ds_read_b64 %s, v10 offset:%d' % (vr(F + (rho * 8 + m) * 4 + 2 * q, 2), 512 * m + 64 * rho + 8 * q))
    load_F()
    a('v_add_u32 v10, %d, v10' % (FB - FA))
    cnt_wait(CNTA, '8', 5, 'v12', 1)
    if o['prio']: a('s_setprio %d' % o['prio'])
    a('L_mloop:')
    a('v_mov_b32 v2, %s' % sEp)
    Gs = (G0, G1)
    def gr(b, rho): return 'ds_read_b128 %s, v8 offset:%d' % (vr(Gs[b & 1] + 4 * rho, 4), 512 * b + 64 * (1 - rho))
    def slow(b, top, back):
        a('%s:\nds_read_b32 v5, v12 offset:%d' % (top, 4 * b))
        for rho in range(2): a(gr(b, rho))
        a('s_waitcnt lgkmcnt(0)\nv_cmp_eq_u32 vcc, v2, v5\ns_cbranch_vccnz %s' % back)
        spin_guard(top)
    def mm(b, c, rho):
        a('v_mfma_f32_16x16x32_bf16 %s, %s, %s, %s' % (vr(ACC + 4 * c, 4), vr(F + (rho * 8 + c - b) * 4, 4), vr(Gs[b & 1] + 4 * rho, 4),
            '0' if (b == 0 and rho == 0) else vr(ACC + 4 * c, 4)))
    cnt_wait(PRE, sEp, 5, 'v12', 2)
    slow(0, 'L_slow0', 'L_back0')
    a('L_back0:')
    estamp('c_first')
    for b in range(8):
        seq = [(b, rho) for rho in range(2)] + [(c, rho) for rho in range(2) for c in range(b + 1, 8)]
        M = len(seq)
        gaps = {}
        def put(i, txt): gaps.setdefault(min(max(i, 0), M - 1), []).append(txt)
        reads = ['ds_read_b32 v5, v12 offset:%d' % (4 * (b + 1))] + [gr(b + 1, rho) for rho in range(2)] if b < 7 else []
        wr = 'ds_write_b128 v9, %s offset:%d' % (vr(ACC + 4 * b, 4), 8192 * b)
        fl = 'ds_write_b32 v11, v2 offset:%d' % (32 * b)
        pw = min(o['pw'], M - 1)
        st = M - o['lead'] - 1
        if st > pw:
            put(pw, wr); put(pw, fl)
            for i, t in enumerate(reads): put(st + i, t)
            na = 0
        else:
            for i, t in enumerate(reads): put(min(i, pw), t)
            put(pw, wr); put(pw, fl)
            na = 2
        if b < 7: put(M - 1, 's_waitcnt lgkmcnt(%d)\nv_cmp_eq_u32 vcc, v2, v5' % na)
        for i, (c, rho) in enumerate(seq):
            mm(b, c, rho)
            for t in gaps.get(i, []): a(t)
        if b < 7: a('s_cbranch_vccz L_slow%d\nL_back%d:' % (b + 1, b + 1))
    estamp('c_end')
    a('s_cmp_eq_u32 %s, 3\ns_cbranch_scc1 L_done' % sEp)
    a('s_add_u32 %s, %s, 1' % (sEp, sEp))
    a('s_cmp_eq_u32 %s, 2\ns_cbranch_scc0 L_mloop' % sEp)
    cnt_wait(CNTA, '16', 5, 'v12', 1)
    load_F()
    a('s_branch L_mloop')
    for b in range(1, 8): slow(b, 'L_slow%d' % b, 'L_back%d' % b)

    a('L_aux:')
    PAR = 16
    a('s_lshl_b32 s56, s4, 9\ns_and_b32 s59, s3, 3\ns_lshl_b32 s59, s59, 7\ns_add_u32 s56, s56, s59')
    a('v_lshl_add_u32 v24, v1, 1, s56')
    a('s_and_b32 s59, s3, 2\ns_add_u32 s59, s59, s57\nv_mov_b32 v25, s59')
    for i in range(7): a('v_mov_b32 v%d, 0' % (PAR + i))
    a('s_waitcnt lgkmcnt(0)')
    stamp('entry')
    a('global_load_short_d16_hi v%d, v25, %s' % (PAR + 6, pLDT))
    a('global_load_short_d16_hi v%d, v24, %s' % (PAR, pARE))
    a('global_load_short_d16_hi v%d, v24, %s' % (PAR + 1, pAIM))
    a('s_cmp_ge_u32 s3, 12\ns_cbranch_scc1 L_nopar')
    for i, p in enumerate([pBRE, pBIM, pCRE, pCIM]):
        a('global_load_short_d16_hi v%d, v24, %s' % (PAR + 2 + i, p))
    a('L_nopar:')
    a('s_barrier')
    a('s_add_u32 s52, s50, %d\ns_addc_u32 s53, s51, 0' % o['wso'])
    a('s_load_dword %s, %s, s57\ns_load_dword %s, %s, s58' % (sDB, pDSK, sT, pWS))
    npre = 0
    if o['prefetch']:
        a('s_getpc_b64 s[56:57]\ns_sub_u32 s56, s56, L_pc-%s_kernel\ns_subb_u32 s57, s57, 0' % NAME) if False else None
        a('s_getpc_b64 s[56:57]\nL_pc:\ns_sub_u32 s56, s56, L_pc-%s_kernel\ns_subb_u32 s57, s57, 0' % NAME)
        a('s_lshr_b32 s58, s2, 3\ns_lshl_b32 s58, s58, 9\nv_and_b32 v26, 7, v0\nv_lshl_add_u32 v26, v26, 6, s58')
        a('v_mov_b32 v27, s57\nv_add_co_u32 v26, vcc, s56, v26\nv_addc_co_u32 v27, vcc, 0, v27, vcc')
        a('global_load_dword v127, v[26:27], off')
        npre = 1
    if o['hprio']: a('s_setprio %d' % o['hprio'])
    PA_, PTA = 112, 116
    GA = 100
    a('v_lshrrev_b32 v30, 1, v1\nv_and_b32 v31, 1, v1\nv_lshrrev_b32 v32, 2, v1\nv_and_b32 v33, 3, v1')
    a('s_mul_i32 s6, s4, %d' % CSTR)
    a('s_cmp_ge_u32 s3, 12\ns_cbranch_scc1 L_aR\ns_cmp_ge_u32 s3, 10\ns_cbranch_scc1 L_aF')
    a('s_and_b32 s56, s3, 1\ns_mul_i32 s58, s56, %d' % (32 * RSTR))
    a('v_mul_u32_u24 v34, %d, v30\nv_add_u32 v34, s58, v34' % RSTR)
    a('s_lshl_b32 s59, s4, 5\nv_lshl_add_u32 v8, v31, 4, v34\nv_add_u32 v8, s59, v8')
    a('s_lshl_b32 s59, s4, 3\ns_add_u32 s59, s59, %d\nv_lshl_add_u32 v14, v31, 2, v34\nv_add_u32 v14, s59, v14' % TAGO)
    a('s_lshl_b32 s59, s56, 9\ns_add_u32 s59, s59, %d' % (GBUF + 512))
    a('v_mul_u32_u24 v9, %d, v31\nv_lshl_add_u32 v9, v30, 4, v9\nv_add_u32 v9, s59, v9' % GSTR)
    a('s_lshl_b32 s59, s56, 2\ns_add_u32 s59, s59, %d\nv_mov_b32 v12, s59\nv_mov_b32 v11, %d' % (FLG, FLP + 32 * 7))
    a('s_branch L_aD')
    a('L_aF:')
    a('s_and_b32 s56, s3, 1')
    a('v_lshrrev_b32 v34, 2, v32\nv_and_b32 v35, 3, v32\nv_lshl_add_u32 v34, v35, 3, v34')
    a('v_lshrrev_b32 v35, 1, v34\nv_and_b32 v34, 1, v34\nv_lshrrev_b32 v36, 1, v33\nv_lshl_add_u32 v34, v34, 1, v36')
    a('s_lshl_b32 s59, s56, 13\ns_add_u32 s59, s59, %d' % PBUF)
    a('v_add_u32 v35, v35, v34\nv_lshlrev_b32 v34, 8, v34\nv_lshl_add_u32 v34, v31, 3, v34\nv_add_u32 v34, s59, v34')
    a('v_and_b32 v36, 15, v35\nv_lshl_add_u32 v10, v36, 4, v34\nv_add_u32 v35, 2, v35\nv_and_b32 v36, 15, v35\nv_lshl_add_u32 v9, v36, 4, v34')
    a('s_lshl_b32 s59, s56, 2\ns_add_u32 s59, s59, %d\nv_mov_b32 v7, s59' % FLS)
    a('s_lshl_b32 s59, s56, 11\ns_add_u32 s59, s59, s6\ns_add_u32 s59, s59, %d\nv_lshl_add_u32 v8, v1, 4, s59' % XCR)
    a('s_lshl_b32 s59, s56, 5\ns_add_u32 s59, s59, %d\nv_mov_b32 v11, s59' % FLP)
    a('s_branch L_aD')
    a('L_aR:')
    a('s_and_b32 s56, s3, 3')
    a('s_and_b32 s58, s2, 31\ns_and_b32 s59, s58, 7\ns_lshl_b32 s59, s59, 2\ns_lshr_b32 s58, s58, 3\ns_add_u32 s58, s58, s59')
    a('s_lshl_b32 s58, s58, 6\ns_lshl_b32 s59, s5, 11\ns_add_u32 s58, s58, s59\ns_mul_i32 s59, s56, %d\ns_add_u32 s58, s58, s59\ns_add_u32 s58, s58, %d' % (64 * CSTR, XCR))
    a('v_mul_u32_u24 v8, %d, v32\nv_lshl_add_u32 v8, v33, 4, v8\nv_add_u32 v8, s58, v8' % CSTR)
    a('s_lshl_b32 s58, s56, 8\ns_add_u32 s58, s58, %d' % RIN)
    a('v_mul_u32_u24 v14, %d, v33\nv_lshl_add_u32 v14, v32, 2, v14\nv_add_u32 v14, s58, v14' % (2 * RISTR))
    a('s_mul_i32 s58, s56, %d\ns_add_u32 s58, s58, %d\nv_lshl_add_u32 v5, v1, 4, s58' % (2 * RISTR, RIN))
    a('s_mul_i32 s58, s56, %d\ns_add_u32 s58, s58, %d\nv_lshl_add_u32 v6, v1, 4, s58' % (2 * ROSTR, ROUT))
    a('s_lshl_b32 s58, s56, 7\nv_add_u32 v34, s58, v1')
    tr_addr(7, 34, 35)
    a('v_lshl_add_u32 v3, v34, 4, s7\ns_add_u32 s58, s7, %d\nv_lshl_add_u32 v4, v34, 2, s58' % TAGO)
    a('v_add_u32 v3, %d, v3\nv_add_u32 v4, %d, v4' % (PSTR, PSTR))
    a('s_lshl_b32 s58, s5, 2\ns_add_u32 s58, s58, %d\nv_mov_b32 v11, s58\nv_mov_b32 v12, %d' % (FLS, FLG))
    a('s_lshl_b32 s6, s2, 3\ns_lshl_b32 s58, s56, 1\ns_add_u32 s6, s6, s58\ns_lshl_b32 s6, s6, 10')
    a('L_aD:')
    a('v_mov_b32 v125, %d\nv_mov_b32 v126, 1' % FLG)
    a('s_bfe_u32 s56, s3, 0x10002\ns_mul_i32 s58, s56, %d\ns_add_u32 s58, s58, %d\ns_mul_i32 s59, s56, %d\ns_add_u32 s59, s59, %d' % (FCH, FB, TSTR // 2, T16 // 2))
    a('v_and_b32 v34, 255, v0\nv_lshl_add_u32 v13, v34, 4, s58')
    a('v_lshlrev_b32 v35, 3, v34\nv_cvt_f32_u32 v64, v35')
    for e in range(1, 12): a('v_add_f32 v%d, 0x%08x, v64' % (64 + e, fbits(e)))
    for e in range(0, 12, 2): a('v_cvt_pk_bf16_f32 v%d, v%d, v%d' % (76 + e // 2, 64 + e, 65 + e))
    unpack(64, 76, 6)
    for e in range(12): a('v_cvt_u32_f32 v%d, v%d' % (64 + e, 64 + e))
    for e in range(12): a('v_lshrrev_b32 v%d, 3, v%d' % (76 + e, 64 + e))
    for e in range(12): a('v_add3_u32 v%d, v%d, v%d, s59' % (64 + e, 64 + e, 76 + e))
    for e in range(12): a('v_lshlrev_b32 v%d, 1, v%d' % (GA + e, 64 + e))
    a('s_mov_b32 s56, %d\ns_mov_b32 s58, %d\ns_cmp_ge_u32 s3, 10\ns_cselect_b32 s56, 4096, s56\ns_cmp_ge_u32 s3, 12\ns_cselect_b32 s56, %d, s56\ns_cselect_b32 s58, 64, s58' % (64 * RSTR, 64 * RSTR, 16 * CSTR))
    a('v_mov_b32 v%d, v8\nv_mov_b32 v%d, v14' % (PA_, PTA))
    for k in range(1, 4): a('v_add_u32 v%d, s56, v%d\nv_add_u32 v%d, s58, v%d' % (PA_ + k, PA_ + k - 1, PTA + k, PTA + k - 1))
    g = PAR
    vM = 15
    a('s_waitcnt vmcnt(%d) lgkmcnt(0)' % npre)
    stamp('par_in')
    a('s_add_u32 %s, %s, 1' % (sT, sT))
    a('s_bfe_u32 s56, s3, 0x10001\ns_mul_i32 s56, s56, %d\ns_and_b32 s58, s3, 1\ns_lshl_b32 s58, s58, 8\ns_add_u32 s56, s56, s58' % MCH)
    a('v_lshl_add_u32 v%d, v1, 2, s56' % vM)
    a('v_mul_f32 v%d, 0x3fb8aa3b, v%d' % (g + 6, g + 6))
    a('v_exp_f32 v%d, v%d' % (g + 6, g + 6))
    a('v_cvt_pk_bf16_f32 v%d, v%d, v%d' % (g + 6, g + 6, g + 6))
    a('v_lshlrev_b32 v%d, 16, v%d' % (g + 6, g + 6))
    a('v_mul_f32 v%d, v%d, v%d\nv_mul_f32 v%d, v%d, v%d' % (g, g, g + 6, g + 1, g + 1, g + 6))
    a('v_mul_f32 v%d, 0x3fb8aa3b, v%d\nv_mul_f32 v%d, 0x3e22f983, v%d' % (g, g, g + 1, g + 1))
    def directs(lst):
        for d, x, t in lst:
            a('v_mul_f32 v%d, 0x%08x, v%d\nv_mul_f32 v%d, 0x%08x, v%d' % (t, fbits(x), g, d + 1, fbits(x), g + 1))
        for d, x, t in lst: a('v_fract_f32 v%d, v%d' % (d + 1, d + 1))
        for d, x, t in lst: a('v_exp_f32 v%d, v%d' % (t, t))
        for d, x, t in lst: a('v_cos_f32 v%d, v%d' % (d, d + 1))
        for d, x, t in lst: a('v_sin_f32 v%d, v%d' % (d + 1, d + 1))
        for d, x, t in lst: a('v_pk_mul_f32 %s, %s, %s op_sel_hi:[1,0]' % (vr(d, 2), vr(d, 2), vr(t, 2)))
    def cmuls(lst):
        for d, p, q in lst: a('v_pk_mul_f32 %s, %s, %s op_sel:[0,0] op_sel_hi:[0,1]' % (vr(d, 2), vr(p, 2), vr(q, 2)))
        for d, p, q in lst: a('v_pk_fma_f32 %s, %s, %s, %s op_sel:[1,1,0] op_sel_hi:[1,0,1] neg_lo:[1,0,0]' % (vr(d, 2), vr(p, 2), vr(q, 2), vr(d, 2)))
    tmpi = [0]
    def emits(lst):
        ts = []
        for row, z, neg in lst:
            t = 24 + (tmpi[0] % 12); tmpi[0] += 1; ts.append(t)
            a('v_cvt_pk_bf16_f32 v%d, v%d, %sv%d' % (t, z, '-' if neg else '', z + 1))
        for (row, z, neg), t in zip(lst, ts):
            a('ds_write_b32 v%d, v%d offset:%d' % (vM, t, row * MROW))
    a('s_cmp_ge_u32 s3, 12\ns_cbranch_scc1 L_kb')
    z8, z128, z16 = 40, 42, 44
    qe, qo, p2 = [46, 48], [50, 52], [54, 56]
    directs([(z8, 8.0, 60), (z128, 128.0, 62), (p2[0], 1024.0, 64)])
    a('v_mul_f32 v%d, v%d, v%d\nv_mul_f32 v%d, v%d, v%d' % (g + 2, g + 2, g + 6, g + 3, g + 3, g + 6))
    cmuls([(qe[0], g + 4, g + 2), (z16, z8, z8)])
    cmuls([(qo[0], qe[0], z8)])
    for j in range(8):
        cur, nxt = j & 1, (j + 1) & 1
        lst = [(p2[nxt], p2[cur], z128)]
        if j < 7: lst += [(qe[nxt], qe[cur], z16), (qo[nxt], qo[cur], z16)]
        cmuls(lst)
        emits([(41 + 2 * j, qe[cur], 1), (42 + 2 * j, qo[cur], 1), (32 + j, p2[cur], 0)])
    emits([(40, p2[0], 0)])
    a('s_branch L_kd\nL_kb:')
    z = {s: 38 + 2 * s for s in range(1, 8)}
    z128, z256, z512, z384 = 54, 56, 58, 60
    w = [72 + 2 * i for i in range(12)]
    directs([(z[1], 1.0, 62), (z128, 128.0, 64), (z256, 256.0, 66), (z512, 512.0, 68)])
    a('v_mov_b32 v24, 0x3f80\nds_write_b32 v%d, v24' % vM)
    tmpi[0] = 1
    cmuls([(z[2], z[1], z[1]), (z384, z256, z128), (w[0], z512, z128), (w[1], z512, z256)])
    emits([(1, z[1], 0), (8, z128, 0), (16, z256, 0), (24, z512, 0)])
    cmuls([(z[3], z[2], z[1]), (z[4], z[2], z[2]), (w[2], w[1], z128), (w[3], z128, z[1]), (w[4], z128, z[2]), (w[5], z256, z[2]), (w[6], z384, z[2])])
    emits([(2, z[2], 0), (20, z384, 0), (26, w[0], 0), (28, w[1], 0)])
    cmuls([(z[5], z[4], z[1]), (z[6], z[4], z[2]), (z[7], z[4], z[3]), (w[7], z512, z[4]), (w[8], w[0], z[4]), (w[9], w[1], z[4]), (w[10], w[2], z[4])])
    emits([(3, z[3], 0), (4, z[4], 0), (30, w[2], 0), (9, w[3], 0), (10, w[4], 0), (17, w[5], 0), (21, w[6], 0)])
    cmuls([(w[0], z128, z[3]), (w[1], z128, z[4]), (w[3], z256, z[4]), (w[4], z384, z[4])])
    emits([(5, z[5], 0), (6, z[6], 0), (7, z[7], 0), (25, w[7], 0), (27, w[8], 0), (29, w[9], 0), (31, w[10], 0)])
    cmuls([(w[2], z128, z[5]), (w[5], z128, z[6]), (w[6], z128, z[7]), (w[7], z256, z[6]), (w[8], z384, z[6])])
    emits([(11, w[0], 0), (12, w[1], 0), (18, w[3], 0), (22, w[4], 0)])
    emits([(13, w[2], 0), (14, w[5], 0), (15, w[6], 0), (19, w[7], 0), (23, w[8], 0)])
    a('L_kd:')
    stamp('kvals')
    cnt_add(CNT1, 'v126', 'v125')
    PD, PT = 64, 80
    def pissue(k):
        a('global_load_dwordx4 %s, v%d, %s sc1' % (vr(PD + 4 * k, 4), PA_ + k, sX))
        a('global_load_dword v%d, v%d, %s sc1' % (PT + k, PTA + k, sX))
    a('s_cmp_lt_u32 s3, 10\ns_cbranch_scc1 L_kskip')
    cnt_wait(CNT1, '8', 16, 'v125')
    a('s_sub_u32 s56, s3, 10')
    a('s_cmp_ge_u32 s56, 3\ns_cselect_b32 s58, 1, 0\ns_mul_i32 s59, s58, 3\ns_sub_u32 s59, s56, s59')
    a('v_and_b32 v16, 15, v1\nv_lshrrev_b32 v17, 4, v1\nv_mov_b32 v19, v16\nv_mov_b32 v28, 0')
    a('s_cmp_eq_u32 s59, 0\ns_cbranch_scc0 L_k1')
    a('v_lshrrev_b32 v18, 3, v16\nv_and_b32 v24, 7, v16\nv_lshl_add_u32 v18, v18, 7, v24')
    a('s_lshl_b32 s62, %s, 16\ns_and_b32 s63, %s, 0xffff0000\ns_cmp_eq_u32 s58, 0\ns_cselect_b32 s62, s62, s63' % (sDB, sDB))
    a('v_writelane_b32 v28, s62, 0')
    a('s_branch L_kx')
    a('L_k1:\ns_cmp_eq_u32 s59, 1\ns_cbranch_scc0 L_k2')
    a('v_lshrrev_b32 v18, 2, v16\nv_and_b32 v24, 3, v16\nv_lshlrev_b32 v24, 1, v24\nv_lshl_add_u32 v18, v18, 7, v24\nv_add_u32 v18, 256, v18')
    a('v_lshrrev_b32 v24, 1, v16\nv_and_b32 v25, 1, v16\nv_lshlrev_b32 v25, 2, v25\nv_lshl_add_u32 v24, v24, 7, v25')
    a('v_cmp_gt_u32 vcc, 8, v16\nv_cndmask_b32 v18, v24, v18, vcc\ns_branch L_kx')
    a('L_k2:\nv_min_u32 v19, 8, v16\nv_lshlrev_b32 v18, 7, v19\nv_add_u32 v18, 1024, v18')
    a('L_kx:')
    a('s_mul_i32 s62, s58, %d\ns_mul_i32 s63, s59, %d\ns_add_u32 s63, s63, s62\ns_add_u32 s62, s62, %d' % (MCH, 16 * MROW, 41 * MROW))
    a('v_mul_u32_u24 v19, %d, v19\nv_lshl_add_u32 v19, v17, 4, v19\nv_add_u32 v19, s63, v19' % MROW)
    a('v_mul_u32_u24 v21, %d, v16\nv_lshl_add_u32 v21, v17, 4, v21\nv_add_u32 v21, s62, v21' % MROW)
    for s in range(8):
        a('ds_read_b128 %s, v19 offset:%d' % (vr(36 + 4 * s, 4), 64 * s))
        a('ds_read_b128 %s, v21 offset:%d' % (vr(68 + 4 * s, 4), 64 * s))
    a('v_lshlrev_b32 v23, 4, v17')
    for r in range(4): a('ds_bpermute_b32 v%d, v23, v18 offset:%d' % (24 + r, 4 * r))
    a('v_mov_b32 v29, 0\nv_mov_b32 v30, 0\nv_mov_b32 v31, 0')
    a('s_mul_i32 s62, s58, %d\ns_add_u32 s62, s62, %d' % (TSTR, T16))
    a('v_lshlrev_b32 v22, 3, v16')
    for s in range(8):
        if s % 2 == 0: a('s_waitcnt lgkmcnt(%d)' % min(15, 4 + 16 - 2 * (s + 2)))
        a('v_mfma_f32_16x16x32_bf16 v[28:31], %s, %s, v[28:31]' % (vr(36 + 4 * s, 4), vr(68 + 4 * s, 4)))
    a('s_waitcnt lgkmcnt(0)')
    for r in range(4): a('v_add_u32 v%d, v%d, v22' % (24 + r, 24 + r))
    for r in range(4): a('v_lshrrev_b32 v%d, 3, v%d' % (32 + r, 24 + r))
    for r in range(4): a('v_add_u32 v%d, v%d, v%d' % (24 + r, 24 + r, 32 + r))
    for r in range(4): a('v_lshl_add_u32 v%d, v%d, 1, s62' % (24 + r, 24 + r))
    a('v_cvt_pk_bf16_f32 v32, v28, v29\nv_cvt_pk_bf16_f32 v33, v30, v31')
    a('ds_write_b16 v24, v32\nds_write_b16_d16_hi v25, v32\nds_write_b16 v26, v33\nds_write_b16_d16_hi v27, v33')
    a('L_kskip:')
    cnt_add(CNTA, 'v126', 'v125')
    JK = 120
    a('s_add_u32 s58, %s, 1\ns_lshl_b32 s59, s58, 1\nv_mov_b32 v%d, 0\nv_mov_b32 v%d, 0\nv_mov_b32 v%d, s58\nv_mov_b32 v%d, 0\nv_mov_b32 v%d, s59' % (sT, JK, JK + 1, JK + 2, JK + 3, JK + 4))
    def warm_cr():
        for it in range(4):
            for h in range(2):
                a('global_store_dwordx4 v%d, %s, %s offset:%d sc1' % (PA_ + it, vr(JK, 4), sX, 1024 * h))
    def warm_rc():
        for h in range(2):
            a('global_store_dwordx4 v3, %s, %s offset:%d sc1\nglobal_store_dword v4, v%d, %s offset:%d sc1' % (vr(JK, 4), sX, 1024 * h, JK + 4, sX, 256 * h))
    if o['wb'] == 2:
        a('s_lshr_b32 s56, s3, 1\ns_cmp_eq_u32 s56, 5\ns_cbranch_scc0 L_nw2')
        warm_cr()
        a('L_nw2:')
    cnt_wait(CNTA, '8', 16, 'v125')
    for e in range(12): a('ds_read_u16 v%d, v%d' % (76 + e, GA + e))
    a('s_waitcnt lgkmcnt(0)')
    for e in range(6): a('v_lshl_or_b32 v%d, v%d, 16, v%d' % (64 + e, 77 + 2 * e, 76 + 2 * e))
    a('s_and_b32 s56, s3, 3\ns_cmp_eq_u32 s56, 0')
    build_copies(64, 76, 13, 0)
    cnt_add(CNTA, 'v126', 'v125')
    stamp('kb_done')
    a('s_cmp_ge_u32 s3, 12\ns_cbranch_scc1 L_R0\ns_cmp_lt_u32 s3, 10\ns_cbranch_scc1 L_gp')
    if o['wb'] == 1: warm_cr()
    a('L_floop:')
    a('v_mov_b32 v2, %s' % sEp)
    cnt_wait(PRE, sEp, 16, 'v125', 2)
    for it in range(4):
        top, done = L('Lf'), L('Lfd')
        a('%s:\nds_read_b128 v[16:19], v11 offset:%d\nds_read_b128 v[20:23], v11 offset:%d' % (top, 64 * it, 64 * it + 16))
        if o.get('fspec', 1):
            for w_ in range(8): a('ds_read_b64 %s, v10 offset:%d' % (vr(32 + 2 * w_, 2), 16384 * it + 1024 * w_))
        a('s_waitcnt lgkmcnt(%d)' % (8 if o.get('fspec', 1) else 0))
        a('v_min3_u32 v16, v16, v17, v18\nv_min3_u32 v20, v20, v21, v22\nv_min3_u32 v16, v16, v19, v23\nv_min_u32 v16, v16, v20')
        a('v_cmp_eq_u32 vcc, v2, v16\ns_cbranch_vccnz %s' % done)
        if o['sl']: a('s_sleep %d' % o['sl'])
        spin_guard(top)
        a('%s:' % done)
        for h in range(2):
            if h == 0 and o.get('fspec', 1): continue
            for w_ in range(8): a('ds_read_b64 %s, v%d offset:%d' % (vr(32 + 16 * h + 2 * w_, 2), (10, 9)[h], 16384 * it + 1024 * w_))
        for h in range(2):
            b0 = 32 + 16 * h
            a('s_waitcnt lgkmcnt(%d)' % (8 if h == 0 else 0))
            for c in range(2):
                a('v_pk_add_f32 %s, %s, %s' % (vr(b0 + 8 * c, 2), vr(b0 + 8 * c, 2), vr(b0 + 8 * c + 2, 2)))
                a('v_pk_add_f32 %s, %s, %s' % (vr(b0 + 8 * c + 4, 2), vr(b0 + 8 * c + 4, 2), vr(b0 + 8 * c + 6, 2)))
            for c in range(2):
                a('v_pk_add_f32 %s, %s, %s' % (vr(b0 + 8 * c, 2), vr(b0 + 8 * c, 2), vr(b0 + 8 * c + 4, 2)))
            d = 24 + 4 * h
            a('v_cvt_pk_bf16_f32 v%d, v%d, v%d\nv_cvt_pk_bf16_f32 v%d, v%d, v%d' % (d, b0, b0 + 8, d + 1, b0 + 1, b0 + 9))
            a('v_add3_u32 v%d, v%d, v%d, %s\nv_xor_b32 v%d, %s, v%d' % (d + 2, d, d + 1, sT, d + 3, sT, d + 1))
            a('global_store_dwordx4 v%d, %s, %s offset:%d sc1' % (PA_ + it, vr(d, 4), sX, 1024 * h))
        a('ds_write_b32 v7, v2 offset:%d' % (8 * it))
        if it == 0: estamp('c_first')
    estamp('c_end')
    a('s_cmp_eq_u32 %s, 3\ns_cbranch_scc1 L_done' % sEp)
    a('s_add_u32 %s, %s, 1\ns_add_u32 %s, %s, 2\ns_add_u32 s52, s52, %d\ns_addc_u32 s53, s53, 0' % (sEp, sEp, sT, sT, PSTR))
    if o['wb']: warm_cr()
    a('s_branch L_floop')
    dg = [int(x) for x in str(o['dg']).split(',')]
    def gcheck(k, cnt, tag):
        a('s_waitcnt vmcnt(%d)' % cnt)
        d = PD + 4 * k
        tagof(20, d)
        a('v_cmp_ne_u32 vcc, v20, v%d\ns_cbranch_vccz L_po%s' % (PT + k, tag))
        a('L_pr%s:\ns_mov_b64 exec, vcc' % tag)
        sleep(o['rs'])
        pissue(k)
        a('s_waitcnt vmcnt(0)')
        tagof(20, d)
        a('v_cmp_ne_u32 vcc, v20, v%d\ns_cbranch_vccz L_pz%s' % (PT + k, tag))
        spin_guard('L_pr%s' % tag)
        a('L_pz%s:\ns_mov_b64 exec, -1\nL_po%s:' % (tag, tag))
        a('ds_write_b128 v9, %s offset:%d' % (vr(d, 4), 1024 * k))
        a('ds_write_b32 v12, v2 offset:%d' % (8 * k))
    a('L_gp:')
    a('v_mov_b32 v2, %s' % sEp)
    cnt_wait(CNTM, '8', 16, 'v125', 1)
    sleep(o['da'])
    for k in range(4): pissue(k)
    a('ds_write_b32 v125, v2 offset:%d' % (PRE - FLG))
    for k in range(4):
        gcheck(k, 2 * (3 - k), 'a%d' % k)
        if k == 0: estamp('c_first')
    estamp('c_end')
    a('L_gloop:')
    top, done = L('Lg'), L('Lgd')
    a('%s:\nds_read_b128 v[16:19], v11\nds_read_b128 v[20:23], v11 offset:16\ns_waitcnt lgkmcnt(0)' % top)
    a('v_min3_u32 v16, v16, v17, v18\nv_min3_u32 v20, v20, v21, v22\nv_min3_u32 v16, v16, v19, v23\nv_min_u32 v16, v16, v20')
    a('v_cmp_eq_u32 vcc, v2, v16\ns_cbranch_vccnz %s\ns_sleep 1' % done)
    spin_guard(top)
    a('%s:' % done)
    a('s_add_u32 %s, %s, 1\ns_add_u32 %s, %s, 2\ns_add_u32 s52, s52, %d\ns_addc_u32 s53, s53, 0' % (sEp, sEp, sT, sT, PSTR))
    a('v_mov_b32 v2, %s' % sEp)
    sleep(o['dg0'])
    a('s_cmp_eq_u32 s3, 8\ns_cbranch_scc1 L_g8')
    sleep(o['dg1'])
    a('L_g8:')
    pissue(0)
    a('ds_write_b32 v125, v2 offset:%d' % (PRE - FLG))
    gcheck(0, 0, 'b0')
    estamp('c_first')
    sleep(dg[0])
    pissue(1)
    gcheck(1, 0, 'b1')
    sleep(dg[1])
    pissue(2)
    sleep(dg[2])
    pissue(3)
    gcheck(2, 2, 'b2')
    gcheck(3, 0, 'b3')
    estamp('c_end')
    a('s_cmp_eq_u32 %s, 3\ns_cbranch_scc1 L_done\ns_branch L_gloop' % sEp)
    X, Y, N = 16, 32, 48
    def rsync():
        top, done = L('Ls'), L('Lsd')
        a('s_add_u32 %s, %s, 4' % (sSync, sSync))
        a('s_mov_b64 exec, 1\nds_add_u32 v12, v9 offset:%d\ns_mov_b64 exec, -1' % (CNT - FLG))
        a('%s:\nds_read_b32 v10, v12 offset:%d\ns_waitcnt lgkmcnt(0)\nv_cmp_le_u32 vcc, %s, v10\ns_cbranch_vccnz %s' % (top, CNT - FLG, sSync, done))
        spin_guard(top)
        a('%s:' % done)
    a('L_R0:')
    a('v_lshl_add_u32 v15, v1, 4, s6\nv_mov_b32 v9, 1')
    a('global_load_dwordx4 v[32:35], v15, %s\nglobal_load_dwordx4 v[36:39], v15, %s offset:1024' % (pQ, pQ))
    if o['wb']: warm_rc()
    cnt_wait(CNTA, '16', 10, 'v125', 1)
    a('s_waitcnt vmcnt(%d)' % (4 if o['wb'] else 0))
    unpack(X, 32, 8)
    ln2([(X, N), (X + 8, N + 8)], 64)
    a('L_rloop:')
    lds_wait_eq('v11', 0, sEp, 10)
    sleep(o['dr'])
    estamp('r_go')
    D = 64
    for n in range(4): a('global_load_dwordx4 %s, v%d, %s sc1' % (vr(D + 4 * n, 4), PA_ + n, sX))
    for n in range(4):
        d = D + 4 * n
        ok, re, z_ = L('Lro'), L('Lrr'), L('Lrz')
        a('s_waitcnt vmcnt(%d)' % (3 - n))
        a('v_add3_u32 v80, v%d, v%d, %s\nv_xor_b32 v81, %s, v%d\nv_cmp_ne_u64 vcc, %s, v[80:81]\ns_cbranch_vccz %s' % (d, d + 1, sT, sT, d + 1, vr(d + 2, 2), ok))
        a('%s:\ns_mov_b64 exec, vcc' % re)
        sleep(o['rs'])
        a('global_load_dwordx4 %s, v%d, %s sc1\ns_waitcnt vmcnt(0)' % (vr(d, 4), PA_ + n, sX))
        a('v_add3_u32 v80, v%d, v%d, %s\nv_xor_b32 v81, %s, v%d\nv_cmp_ne_u64 vcc, %s, v[80:81]\ns_cbranch_vccz %s' % (d, d + 1, sT, sT, d + 1, vr(d + 2, 2), z_))
        spin_guard(re)
        a('%s:\ns_mov_b64 exec, -1\n%s:' % (z_, ok))
        a('ds_write_b32 v%d, v%d\nds_write_b32 v%d, v%d offset:%d' % (PTA + n, d, PTA + n, d + 1, RISTR))
    rsync()
    estamp('r_in')
    a('ds_read_b128 v[64:67], v5\nds_read_b128 v[68:71], v5 offset:%d' % RISTR)
    a('s_add_u32 %s, %s, 2' % (sT, sT))
    a('s_cmp_eq_u32 %s, 1\ns_cbranch_scc0 L_r23' % sEp)
    a('s_waitcnt lgkmcnt(0)')
    unpack(Y, 64, 8)
    a('s_branch L_gate')
    a('L_r23:\ns_waitcnt lgkmcnt(0)')
    unpack(72, 64, 8)
    for i in range(0, 16, 2): a('v_pk_add_f32 %s, %s, %s' % (vr(X + i, 2), vr(X + i, 2), vr(72 + i, 2)))
    a('s_cmp_eq_u32 %s, 3\ns_cbranch_scc1 L_out' % sEp)
    ln2([(X, N), (X + 8, N + 8)], 64)
    a('L_gate:')
    for i in range(0, 16, 2): a('v_pk_fma_f32 %s, %s, %s, %s' % (vr(X + i, 2), vr(N + i, 2), vr(Y + i, 2), vr(X + i, 2)))
    ln2([(X, N), (X + 8, N + 8)], 64)
    for i in range(8): a('v_cvt_pk_bf16_f32 v%d, v%d, v%d' % (64 + i, N + 2 * i, N + 2 * i + 1))
    a('ds_write_b128 v6, v[64:67]\nds_write_b128 v6, v[68:71] offset:%d' % ROSTR)
    rsync()
    for h in range(2):
        a('ds_read_b64_tr_b16 %s, v7 offset:%d\nds_read_b64_tr_b16 %s, v7 offset:%d' % (vr(72 + 4 * h, 2), 4 * ROSTR + 128 * h, vr(74 + 4 * h, 2), 128 * h))
    for h in range(2):
        a('s_waitcnt lgkmcnt(%d)' % (2 - 2 * h))
        a('global_store_dwordx4 v3, %s, %s offset:%d sc1' % (vr(72 + 4 * h, 4), sX, 1024 * h))
        tagof(80 + h, 72 + 4 * h)
        a('global_store_dword v4, v%d, %s offset:%d sc1' % (80 + h, sX, 256 * h))
    estamp('r_sent')
    a('s_add_u32 %s, %s, 1\ns_add_u32 s52, s52, %d\ns_addc_u32 s53, s53, 0' % (sEp, sEp, PSTR))
    if o['wb']:
        a('s_cmp_eq_u32 %s, 2\ns_cbranch_scc0 L_rloop' % sEp)
        warm_rc()
    a('s_branch L_rloop')
    a('L_out:')
    for i in range(8): a('v_cvt_pk_bf16_f32 v%d, v%d, v%d' % (64 + i, X + 2 * i, X + 2 * i + 1))
    a('global_store_dwordx4 v15, v[64:67], %s\nglobal_store_dwordx4 v15, v[68:71], %s offset:1024' % (pOUT, pOUT))
    a('s_cmp_eq_u32 s6, 0\ns_cbranch_scc0 L_done')
    a('s_add_u32 s56, %s, 1\nv_mov_b32 v80, %d\nv_mov_b32 v81, s56\nglobal_store_dword v80, v81, %s' % (sT, GENO, pWS))
    a('L_done:')
    if stamps:
        a('s_waitcnt vmcnt(0)')
        stamp('end')
        assert len(snames) <= 32
        a('s_lshl_b32 s56, s2, 4\ns_add_u32 s56, s56, s3\ns_lshl_b32 s56, s56, 7\ns_add_u32 s56, s56, 0x2000000')
        a('v_mov_b32 v16, s56\ns_mov_b64 exec, 1')
        for i in range(len(snames)):
            a('v_mov_b32 v17, s%d\nglobal_store_dword v16, v17, %s offset:%d' % (70 + i, pWS, 4 * i))
    a('L_exit:')
    body = a.finish()
    hdr = open('cdna_kernels/%s.s.ref' % NAME).read().split('; Override launch')[0]
    txt = hdr + '; @launch grid=(256,1,1) block=(1024,1,1) lds=%d\n' % LDS
    if stamps: txt += '; STAMPS ' + ' '.join(n for n, _ in sorted(snames.items(), key=lambda kv: kv[1])) + '\n'
    txt += '; OPTS v6\n'
    txt += '.amdgcn_target "amdgcn-amd-amdhsa--gfx950"\n.text\n.globl %s_kernel\n.p2align 8\n.type %s_kernel,@function\n%s_kernel:\n' % (NAME, NAME, NAME)
    txt += body + '    s_endpgm\n'
    txt += '.fill 2048, 4, 0xbf800000\n' if o['prefetch'] else ''
    txt += '''.section .rodata,"a"
.p2align 6
.amdhsa_kernel %s_kernel
  .amdhsa_next_free_vgpr 128
  .amdhsa_next_free_sgpr 102
  .amdhsa_accum_offset 128
  .amdhsa_group_segment_fixed_size 0
  .amdhsa_kernarg_size 144
  .amdhsa_user_sgpr_count 2
  .amdhsa_user_sgpr_kernarg_segment_ptr 1
  .amdhsa_system_sgpr_workgroup_id_x 1
.end_amdhsa_kernel
''' % NAME
    return txt
if __name__ == '__main__':
    out = sys.argv[1] if len(sys.argv) > 1 else 'cdna_kernels/%s.s' % NAME
    opts = {}; st = False
    for x in sys.argv[2:]:
        if x == 'st': st = True
        else:
            k, v_ = x.split('='); opts[k] = int(v_) if v_.lstrip('-').isdigit() else v_
    open(out, 'w').write(generate(stamps=st, opts=opts))
```
